```python
import torch

def _softmax(x, axis=-1):
    return torch.softmax(x, dim=axis)
def _gelu(x):
    return torch.nn.functional.gelu(x, approximate="tanh")
def _silu(x):
    return torch.nn.functional.silu(x)
def _sigmoid(x):
    return torch.sigmoid(x)
def _layernorm(x, axis=-1, eps=1e-5):
    m = x.mean(dim=axis, keepdim=True)
    v = x.var(dim=axis, keepdim=True, unbiased=False)
    return (x - m) / torch.sqrt(v + eps)
def _scatter_add(tgt, idx, src, axis=0):
    return tgt.clone().index_add_(axis, idx, src)
def _segment_sum(src, seg, n):
    out = torch.zeros((n,) + src.shape[1:], dtype=src.dtype)
    return out.index_add_(0, seg, src)
def _pad(x, pw):
    flat = tuple(v for pair in reversed(pw) for v in pair)
    return torch.nn.functional.pad(x, flat)

kernel_name = 'gated_mix__spectral_gfnet__ssm_conv_s4__prompt'

def setup_inputs():

    _w = (lambda a: (lambda t: t.to(torch.bfloat16) if t.is_floating_point() else t)(torch.as_tensor(a)))
    def _A_setup():
        B, S, D = 1, 2048, 448
        Df = D // 2 + 1
        return {
            "x": _w((lambda *s: torch.randn(*s, dtype=torch.bfloat16) * 0.05)(B, S, D)),
            "w_r": _w((lambda *s: torch.randn(*s, dtype=torch.bfloat16) * 0.8)(S, Df) * 0.02),
            "w_i": _w((lambda *s: torch.randn(*s, dtype=torch.bfloat16) * 0.8)(S, Df) * 0.02),
        }
    _A_in = _A_setup()

    def _B_setup():
        B, L, D, N = 1, 2048, 448, 256
        A_re = -(lambda _x: torch.exp(torch.as_tensor(_x)))((lambda *s: torch.randn(*s, dtype=torch.bfloat16) * 3.2)(D, N))
        A_im = torch.pi * (lambda *s: torch.randn(*s, dtype=torch.bfloat16) * 0.05)(D, N)
        B_re = (lambda *s: torch.randn(*s, dtype=torch.bfloat16) * 0.05)(D, N)
        B_im = (lambda *s: torch.randn(*s, dtype=torch.bfloat16) * 0.05)(D, N)
        C_re = (lambda *s: torch.randn(*s, dtype=torch.bfloat16) * 0.05)(D, N)
        C_im = (lambda *s: torch.randn(*s, dtype=torch.bfloat16) * 0.1)(D, N)
        log_dt = (lambda *s: torch.randn(*s, dtype=torch.bfloat16) * 0.05)(D) * 0.5 - 4.0
        Dskip = (lambda *s: torch.randn(*s, dtype=torch.bfloat16) * 0.05)(D)
        return {
            "u": _w((lambda *s: torch.randn(*s, dtype=torch.bfloat16) * 0.05)(B, L, D)),
            "A_re": _w(A_re),
            "A_im": _w(A_im),
            "B_re": _w(B_re),
            "B_im": _w(B_im),
            "C_re": _w(C_re),
            "C_im": _w(C_im),
            "log_dt": _w(log_dt),
            "Dskip": _w(Dskip),
        }
    _B_in = _B_setup()

    return {
        "A_x": _A_in["x"],
        "A_w_r": _A_in["w_r"],
        "A_w_i": _A_in["w_i"],
        "B_u": _B_in["u"],
        "B_A_re": _B_in["A_re"],
        "B_A_im": _B_in["A_im"],
        "B_B_re": _B_in["B_re"],
        "B_B_im": _B_in["B_im"],
        "B_C_re": _B_in["C_re"],
        "B_C_im": _B_in["C_im"],
        "B_log_dt": _B_in["log_dt"],
        "B_Dskip": _B_in["Dskip"],
        "gate_w": _w((lambda *s: torch.randn(*s, dtype=torch.bfloat16) * 0.05)(448) * 16.0),
    }

def reference(A_x, A_w_r, A_w_i, B_u, B_A_re, B_A_im, B_B_re, B_B_im, B_C_re, B_C_im, B_log_dt, B_Dskip, gate_w):
    def _A_ref(x, w_r, w_i):
        B, S, D = x.shape
        X = (lambda x, axes=(-2,-1): torch.fft.rfft2(x.float(), dim=axes))(x, axes=(-2, -1))
        W = w_r + 1j * w_i
        X = X * W
        y = (lambda x, s, axes=(-2,-1): torch.fft.irfft2(x, s=s, dim=axes).to(torch.bfloat16))(X, (S, D), axes=(-2, -1))
        return y

    def _B_ref(u, A_re, A_im, B_re, B_im, C_re, C_im, log_dt, Dskip):
        Bsz, L, D = u.shape
        dt = torch.exp(log_dt)[:, None]
        A = A_re + 1j * A_im
        Bc = B_re + 1j * B_im
        Cc = C_re + 1j * C_im
        logdA = dt * A
        dB = dt * Bc
        l = (lambda x, dt: x.to(dt))(torch.arange(L), A_re.dtype)
        P = torch.exp(logdA[:, :, None] * l[None, None, :])
        K = torch.einsum("dn,dnl,dn->dl", Cc, P, dB).real
        L2 = 2 * L
        Kp = _pad(K, ((0, 0), (0, L)))
        up = (lambda x, *d: x.permute(*d))(u, 0, 2, 1)
        up = _pad(up, ((0, 0), (0, 0), (0, L)))
        Kf = (lambda x, axes=(-2,-1): torch.fft.rfft2(x.float(), dim=axes))(Kp[:, None, :], axes=(-2, -1))
        Uf = (lambda x, axes=(-2,-1): torch.fft.rfft2(x.float(), dim=axes))(up[:, :, None, :], axes=(-2, -1))
        Yf = Uf * Kf[None, :, :, :]
        y = (lambda x, s, axes=(-2,-1): torch.fft.irfft2(x, s=s, dim=axes).to(torch.bfloat16))(Yf, (1, L2), axes=(-2, -1))[:, :, 0, :L]
        y = (lambda x, *d: x.permute(*d))(y, 0, 2, 1) + u * Dskip[None, None, :]
        return y

    x = A_x
    g = _sigmoid((x * gate_w).sum(-1, keepdims=True))
    a = _A_ref(x, A_w_r, A_w_i)
    b = _B_ref(x, B_A_re, B_A_im, B_B_re, B_B_im, B_C_re, B_C_im, B_log_dt, B_Dskip)
    return g * a + (1 - g) * b
```

```python
import re, struct

def f2u(x):
    return struct.unpack("<I", struct.pack("<f", x))[0]
def fhex(x):
    return "0x%08x" % f2u(x)

REG_RE = re.compile(r"(?<![\w.])([vas])(?:(\d+)|\[(\d+):(\d+)\])(?![\w])")
TRANS = ("v_exp_f32", "v_log_f32", "v_rcp_f32", "v_rsq_f32", "v_sqrt_f32", "v_sin_f32", "v_cos_f32")

def regs_of(operand):
    out = []
    for m in REG_RE.finditer(operand):
        k = m.group(1)
        if m.group(2) is not None:
            out.append((k, int(m.group(2))))
        else:
            out += [(k, i) for i in range(int(m.group(3)), int(m.group(4)) + 1)]
    for w in ("vcc", "exec", "m0"):
        if re.search(r"(?<![\w.])%s(_lo|_hi)?(?![\w])" % w, operand):
            out.append((w, 0))
    return out

def split_ops(s):
    ops, depth, cur = [], 0, ""
    for ch in s:
        if ch in "[(": depth += 1
        if ch in "])": depth -= 1
        if ch == "," and depth == 0:
            ops.append(cur.strip()); cur = ""
        else:
            cur += ch
    if cur.strip(): ops.append(cur.strip())
    return ops

class Ins:
    def __init__(self, text):
        self.text = text
        t = text.split(";")[0].strip()
        self.label = t.endswith(":")
        self.directive = t.startswith(".")
        self.empty = (t == "")
        self.op = ""; self.rd = []; self.wr = []
        self.kind = None
        if self.label or self.directive or self.empty: return
        parts = t.split(None, 1)
        op = parts[0]; self.op = op
        ops = split_ops(parts[1]) if len(parts) > 1 else []
        mods = ""
        if ops:
            l = ops[-1].split(None, 1)
            if len(l) > 1:
                ops[-1] = l[0]; mods = l[1]
        self.mods = mods; self.ops = ops
        R = [regs_of(o) for o in ops]
        flat = lambda L: [x for r in L for x in r]
        if op.startswith("v_mfma"):
            self.kind = "mfma"
            self.passes = 8 if "32x32x16" in op else 4
            assert ("32x32x16" in op or "16x16x32" in op), op
            self.wr = R[0]; self.srcab = R[1] + R[2]; self.srcc = R[3]; self.rd = self.srcab + self.srcc
        elif op.startswith("v_"):
            self.kind = "valu"
            self.trans = any(op.startswith(x) for x in TRANS)
            self.dpp = ("_dpp" in op) or ("row_" in mods) or ("quad_perm" in mods)
            self.permlane = op.startswith("v_permlane")
            self.dot = op.startswith("v_dot")
            self.lane = op.startswith("v_readlane") or op.startswith("v_readfirstlane") or op.startswith("v_writelane")
            if self.permlane:
                self.wr = R[0] + R[1]; self.rd = R[0] + R[1]
            elif op.startswith("v_cmpx"):
                self.wr = R[0] + [("exec", 0)]; self.rd = flat(R[1:])
            elif op.startswith("v_add_co") or op.startswith("v_sub_co") or op.startswith("v_addc_co") or op.startswith("v_subb_co"):
                self.wr = R[0] + R[1]; self.rd = flat(R[2:])
            else:
                self.wr = R[0]; self.rd = flat(R[1:])
                if op.startswith("v_fmac") or op.startswith("v_dot2c") or op.startswith("v_pk_fmac") or self.dpp:
                    self.rd = self.rd + R[0]
        elif op.startswith("buffer_") or op.startswith("global_"):
            self.kind = "vmem"
            self.lds = (" lds" in (" " + mods)) or ("_lds_" in op)
            if "store" in op or "atomic" in op:
                self.rd = flat(R)
                self.wide_store = ("x3" in op or "x4" in op)
                if op.startswith("buffer_"): self.sdata = R[0]
                else: self.sdata = R[1]
            elif self.lds:
                self.rd = flat(R) + [("m0", 0)]
            else:
                self.wr = R[0]; self.rd = flat(R[1:])
        elif op.startswith("ds_"):
            self.kind = "ds"
            if op.startswith("ds_read") or op.startswith("ds_bpermute") or op.startswith("ds_permute") or op.startswith("ds_swizzle"):
                self.wr = R[0]; self.rd = flat(R[1:])
            else:
                self.rd = flat(R)
            if "addtid" in op: self.rd = self.rd + [("m0", 0)]
        elif op.startswith("s_"):
            self.kind = "salu"
            if op.startswith("s_cmp") or op.startswith("s_cbranch") or op.startswith("s_branch") or op in ("s_waitcnt", "s_barrier", "s_nop", "s_endpgm", "s_setprio", "s_sleep", "s_set_gpr_idx_off"):
                self.rd = flat(R)
            elif op.startswith("s_set_gpr_idx"):
                self.rd = flat(R); self.wr = [("m0", 0)]
            else:
                self.wr = R[0] if R else []; self.rd = flat(R[1:])
                if "saveexec" in op: self.wr = self.wr + [("exec", 0)]
        else:
            raise ValueError("unknown instr: " + text)
    def states(self):
        if self.kind is None: return 0
        if self.op == "s_nop": return int(self.ops[0], 0) + 1
        return 1

def isv(r): return r[0] in ("v", "a")
def iss(r): return r[0] in ("s", "vcc")

def need(p, c):
    n = 0
    pw = set(p.wr); cr = set(c.rd); cw = set(c.wr)
    if p.kind == "valu":
        vw = {r for r in pw if isv(r)}
        sw = {r for r in pw if iss(r)}
        if c.kind == "mfma" and vw & cr: n = max(n, 3 if p.dot else 2)
        if c.kind == "valu":
            if p.trans and not c.trans and vw & cr: n = max(n, 1)
            if c.dpp and vw & cr: n = max(n, 2)
            if c.permlane and vw & cr: n = max(n, 2)
            if c.lane and vw & cr: n = max(n, 1)
            if sw & cr: n = max(n, 4 if c.lane else 2)
            if p.dot and (vw & (cr | cw)) and not (c.op == p.op and not (vw & (cr - cw))): n = max(n, 3)
            if ("exec", 0) in pw:
                if c.dpp: n = max(n, 5)
                if c.lane or c.permlane: n = max(n, 4)
                if ("exec", 0) in cr: n = max(n, 2)
        if p.dot and c.kind in ("vmem", "ds") and vw & cr: n = max(n, 3)
        if p.trans and c.kind in ("vmem", "ds") and vw & cr: n = max(n, 1)
        if c.kind == "vmem" and sw & cr: n = max(n, 5)
        if c.kind == "mfma" and ("exec", 0) in pw: n = max(n, 4)
        if c.kind == "salu" and sw & cr: n = max(n, 1)
    if p.kind == "mfma":
        t = {4: (0, 6, 8, 3), 8: (0, 10, 12, 7)}[p.passes]
        if c.kind == "mfma":
            cc = set(c.srcc)
            if pw & cc:
                if pw == cc and p.passes == c.passes: pass
                else: n = max(n, t[1])
            if pw & set(c.srcab): n = max(n, t[2])
            if (pw & cw) and not (pw & cc): n = max(n, t[2])
        elif c.kind in ("valu", "vmem", "ds"):
            if pw & (cr | cw): n = max(n, t[2])
        if c.kind == "valu" and set(p.srcc) & cw: n = max(n, t[3])
    if p.kind == "vmem" and getattr(p, "wide_store", False):
        if set(p.sdata) & cw and c.kind in ("valu", "mfma"): n = max(n, 2)
        elif set(p.sdata) & cw: n = max(n, 1)
    if p.kind == "salu" and ("m0", 0) in pw and ("m0", 0) in cr and c.kind in ("vmem", "ds"): n = max(n, 1)
    return n

MAXW = 14
def pad(lines, verbose=False):
    ins = [Ins(l) for l in lines]
    out = []
    def required(hist, c):
        dist = 0; req = 0
        for p in reversed(hist):
            if p.kind is None: continue
            r = need(p, c) - dist
            req = max(req, r)
            dist += p.states()
            if dist > MAXW: break
        return req
    for c in ins:
        if c.kind is not None:
            r = required(out, c)
            while r > 0:
                k = min(r, 16)
                out.append(Ins("    s_nop %d" % (k - 1))); r -= k
        out.append(c)
    changed = True
    while changed:
        changed = False
        labels = {i.text.split(";")[0].strip()[:-1]: k for k, i in enumerate(out) if i.label}
        for k, b in enumerate(out):
            if b.kind == "salu" and (b.op.startswith("s_cbranch") or b.op == "s_branch"):
                tgt = b.ops[0]
                if tgt not in labels: continue
                hist = out[max(0, k - 40):k + 1]
                j = labels[tgt]; cnt = 0; worst = 0
                h2 = list(hist)
                nh = len(hist)
                while j < len(out) and cnt <= MAXW:
                    c = out[j]
                    if c.kind is not None:
                        worst = max(worst, required(h2, c))
                        cnt += c.states()
                        if c.op in ("s_branch", "s_endpgm"): break
                    h2.append(c); j += 1
                if worst > 0:
                    out.insert(k, Ins("    s_nop %d" % (worst - 1)))
                    changed = True
                    break
    return [i.text for i in out]

class Asm:
    def __init__(self):
        self.lines = []
    def __call__(self, s):
        for l in s.strip("\n").split("\n"):
            l = l.strip()
            if not l: continue
            if l.endswith(":") or l.startswith("."): self.lines.append(l)
            else: self.lines.append("    " + l)
    def text(self):
        return "\n".join(pad(self.lines)) + "\n"

def vr(a, n=1, k="v"):
    return f"{k}{a}" if n == 1 else f"{k}[{a}:{a+n-1}]"
```

```python
from asmlib import *
from model import Z_OFF, V_OFF, XT_OFF, KR_OFF, BT_OFF, GP_OFF, ROWS, WS_USED
from gen import LG, cmul, header, LOG2E, XB

def gen_p2(A):
    header(A, "p2_kernel")
    A(f"""
    s_load_dwordx2 s[8:9], s[0:1], 120
    s_load_dwordx2 s[12:13], s[0:1], 8
    s_load_dwordx2 s[16:17], s[0:1], 16
    v_lshrrev_b32 v2, 6, v0
    v_and_b32 v1, 63, v0
    s_mov_b32 s10, {WS_USED}
    v_readfirstlane_b32 s35, v2
    s_mov_b32 s11, 0x20000
    v_lshlrev_b32 v3, 4, v1          ; lane*16
    v_and_b32 v4, 15, v1             ; m / col
    v_lshrrev_b32 v5, 4, v1          ; kg / g
    s_cmp_lt_u32 s2, 128
    s_cbranch_scc1 P2_A
    s_cmp_ge_u32 s2, 576
    s_cbranch_scc1 P2_END
    """)
    US, RB, RSZ = 4512, 18048, 4208
    ACC, FB = 16, 48
    NSLOT = 20
    A(f"""
    s_sub_u32 s33, s2, 128           ; d
    s_mul_i32 s36, s33, {ROWS}
    s_lshl_b32 s37, s35, 2
    s_add_u32 s37, s37, s36
    s_add_u32 s37, s37, {XT_OFF - 12}
    s_mul_i32 s38, s35, {US}
    s_add_u32 m0, s38, 384
    s_and_b32 s39, s35, 1
    s_lshr_b32 s40, s35, 1
    s_lshl_b32 s40, s40, 11
    s_lshl_b32 s41, s39, 1
    s_sub_u32 s41, s36, s41
    s_add_u32 s41, s41, s40
    s_add_u32 s41, s41, {KR_OFF + 2}
    s_mul_i32 s39, s39, {RSZ}
    s_add_u32 s39, s39, {RB}
    s_waitcnt lgkmcnt(0)
    """)
    for i in range(4): A(f"buffer_load_dwordx4 v3, s[8:11], s37 offen offset:{1024*i} lds")
    A("s_add_u32 m0, s39, s40")
    for i in range(2): A(f"buffer_load_dwordx4 v3, s[8:11], s41 offen offset:{1024*i} lds")
    for k in range(16): A(f"v_mov_b64 {vr(ACC+2*k,2)}, 0")
    A(f"""
    s_add_u32 s39, s39, {4096 - 384}
    v_mov_b32 v6, s38
    v_mov_b32 v7, s39
    v_cmp_le_u32 vcc, 24, v1
    v_cndmask_b32 v6, v6, v7, vcc
    v_add_u32 v6, v6, v3
    s_mov_b64 exec, 0x7fffffff
    ds_write_b128 v6, {vr(ACC,4)}
    s_mov_b64 exec, -1
    v_lshrrev_b32 v6, 2, v4
    v_lshrrev_b32 v7, 1, v6
    v_xor_b32 v8, v6, v7             ; gray
    v_xor_b32 v9, s35, v4
    v_and_b32 v10, 1, v9             ; rho
    v_bfe_u32 v9, v9, 1, 1
    v_lshl_add_u32 v9, v9, 2, v8     ; i
    v_sub_u32 v9, v5, v9
    v_lshlrev_b32 v9, 4, v9
    v_mul_u32_u24 v10, {RSZ}, v10
    s_lshl_b32 s42, s35, 7           ; 64*q0 = 128 w
    s_sub_u32 s43, {RB + 560 - 64}, s42
    v_add3_u32 v9, v9, v10, s43
    v_and_b32 v8, 1, v8
    v_lshl_add_u32 v8, v8, 1, v7     ; c'
    v_and_b32 v10, 3, v4             ; sigma
    v_mul_u32_u24 v11, {US}, v10
    v_lshl_add_u32 v11, v8, 7, v11
    v_lshl_add_u32 v11, v5, 4, v11
    s_sub_u32 s43, {448 - 64}, s42
    v_add_u32 v11, s43, v11
    v_lshrrev_b32 v6, 1, v5
    v_xor_b32 v6, v5, v6             ; gray(g)
    v_lshlrev_b32 v6, 2, v6
    v_add_u32 v6, v6, v10
    v_mul_u32_u24 v6, {2*448*64}, v6
    v_lshl_add_u32 v6, v8, 4, v6
    s_lshr_b32 s42, s35, 1
    s_lshl_b32 s42, s42, 5
    s_and_b32 s43, s35, 1
    s_add_u32 s42, s42, s43
    s_mul_i32 s42, s42, 448
    s_add_u32 s42, s42, s33
    s_lshl_b32 s42, s42, 6
    s_add_u32 s42, s42, {BT_OFF}
    v_lshlrev_b32 v7, 2, v1
    """)
    for r in (1, 2, 3):
        A(f"s_xor_b32 s43, s35, {r}\ns_mul_i32 s43, s43, 6144\ns_add_u32 s43, s43, {(r-1)*2048}\nv_add_u32 v{11+r}, s43, v7")
    A(f"""
    s_mul_i32 s43, s35, 6144
    v_add_u32 v7, s43, v7
    s_waitcnt vmcnt(0) lgkmcnt(0)
    s_barrier
    """)
    lg = LG(A, "lgkmcnt", 15)
    free = list(range(NSLOT))
    loc = {}
    reads = []
    for it in range(2):
        for k in range(8):
            reads += [(it, "B", k), (it, "A", k)]
    mf = []
    for it in range(2):
        for k in range(8):
            prs = [(k, j) for j in range(k + 1)] + [(i, k) for i in range(k)]
            prs = [p for p in prs if p[0] + p[1] <= 7]
            prs.sort(key=lambda p: (p[0] == k, p[1]))
            mf += [(it,) + p for p in prs]
    last = {}
    for n, (it, i, j) in enumerate(mf):
        last[(it, "A", i)] = n; last[(it, "B", j)] = n
    rp = [0]
    def issue_reads():
        while rp[0] < len(reads) and free and len(lg.q) < 15:
            key = reads[rp[0]]; rp[0] += 1
            sl = free.pop(0); loc[key] = sl
            it, kind, k = key
            extra = 64 if it == 0 else 0
            if kind == "A": A(f"ds_read_b128 {vr(FB+4*sl,4)}, v9 offset:{512*(7-k)+extra}")
            else: A(f"ds_read_b128 {vr(FB+4*sl,4)}, v11 offset:{512*k+extra}")
            lg.issue(key)
    issue_reads()
    for n, (it, i, j) in enumerate(mf):
        ka, kb = (it, "A", i), (it, "B", j)
        for key in (ka, kb):
            assert key in loc
        later = ka if reads.index(ka) > reads.index(kb) else kb
        lg.wait(later)
        t = i + j
        A(f"v_mfma_f32_16x16x32_bf16 {vr(ACC+4*t,4)}, {vr(FB+4*loc[ka],4)}, {vr(FB+4*loc[kb],4)}, {vr(ACC+4*t,4)}")
        for key in (ka, kb):
            if last[key] == n: free.append(loc[key])
        issue_reads()
    A("s_barrier")
    for r in (1, 2, 3):
        for t in range(0, 8, 2):
            A(f"ds_write2st64_b32 v{11+r}, v{ACC+4*t+r}, v{ACC+4*(t+1)+r} offset0:{t} offset1:{t+1}")
    A("s_waitcnt lgkmcnt(0)\ns_barrier")
    for t in range(0, 8, 2):
        for r in range(3):
            A(f"ds_read2st64_b32 {vr(FB+3*t+2*r,2)}, v7 offset0:{8*r+t} offset1:{8*r+t+1}")
    for t in range(0, 8, 2):
        X = FB + 3*t
        A(f"""
        s_waitcnt lgkmcnt({9 - 3*(t//2)})
        v_pk_add_f32 {vr(X,2)}, {vr(X,2)}, {vr(X+2,2)}
        v_add_f32 v{X+4}, v{X+4}, v{ACC+4*t}
        v_add_f32 v{X+5}, v{X+5}, v{ACC+4*t+4}
        v_pk_add_f32 {vr(X,2)}, {vr(X,2)}, {vr(X+4,2)}
        v_cvt_pk_bf16_f32 v{FB+24+t//2}, v{X}, v{X+1}
        """)
    A(f"""
    buffer_store_dwordx4 {vr(FB+24,4)}, v6, s[8:11], s42 offen
    P2_END:
    s_endpgm
    """)
    ZB, WB, ACC, AB = 16, 32, 64, 96
    A(f"""
    P2_A:
    s_lshr_b32 s33, s2, 2            ; c
    s_and_b32 s34, s2, 3
    s_lshl_b32 s34, s34, 2
    s_add_u32 s34, s34, s35          ; tau
    s_mov_b32 s14, 921600
    s_mov_b32 s15, 0x20000
    s_mov_b32 s18, 921600
    s_mov_b32 s19, 0x20000
    v_lshlrev_b32 v6, 2, v4
    v_lshl_add_u32 v7, v5, 7, v6     ; Z voffset
    s_lshl_b32 s36, s33, 16
    s_lshl_b32 s37, s34, 12
    s_add_u32 s36, s36, s37
    v_mul_u32_u24 v8, 28800, v5
    v_lshl_add_u32 v8, v4, 1, v8     ; W voffset
    s_mul_i32 s37, s33, 450
    s_lshl_b32 s38, s34, 5
    s_add_u32 s37, s37, s38
    s_cmp_eq_u32 s34, 15
    s_waitcnt lgkmcnt(0)
    s_cbranch_scc1 P2_A1
    """)
    for u in range(4):
        for j in range(4):
            A(f"buffer_load_dword v{ZB+4*u+j}, v7, s[8:11], s36 offen offset:{Z_OFF + (16*u + 8*(j>>1) + (j&1))*64}")
    for mu in range(8):
        for p in range(2):
            idx = 2*mu + p
            A(f"buffer_load_short_d16_hi v{WB+2*idx}, v8, s[12:15], s37 offen")
            A(f"buffer_load_short_d16_hi v{WB+2*idx+1}, v8, s[16:19], s37 offen")
            if idx < 15: A(f"s_add_u32 s37, s37, {14400 if p == 0 else 7*14400}")
    A(f"""
    P2_A1:
    s_lshl_b32 s38, s35, 4
    v_lshl_add_u32 v9, v5, 1, s38
    v_cvt_f32_u32 v9, v9
    v_mul_f32 v9, {fhex(1/8)}, v9    ; b0/8
    v_lshrrev_b32 v10, 1, v4
    v_cvt_f32_u32 v10, v10
    v_mul_f32 v10, {fhex(1/8)}, v10  ; e0/8
    v_and_b32 v11, 1, v4
    v_cvt_f32_u32 v11, v11
    v_mul_f32 v11, {fhex(0.25)}, v11
    """)
    INC, ANG, CS, PK = ACC, ACC + 4, ACC + 8, ACC + 16
    for j, o in enumerate((0, 1, 8, 9)):
        A(f"v_add_f32 v{INC+j}, {fhex(o/8)}, v9\nv_fma_f32 v{ANG+j}, v{INC+j}, v10, v11")
    A(f"""
    v_lshlrev_b32 v9, 4, v0
    s_mov_b32 s38, 8
    P2_GEN:
    """)
    for j in range(4): A(f"v_cos_f32 v{CS+2*j}, v{ANG+j}\nv_sin_f32 v{CS+2*j+1}, v{ANG+j}")
    for j in range(4): A(f"v_add_f32 v{ANG+j}, v{ANG+j}, v{INC+j}")
    for j in range(4): A(f"v_cvt_pk_bf16_f32 v{PK+j}, v{CS+2*j}, v{CS+2*j+1}")
    A(f"""
    ds_write_b128 v9, {vr(PK,4)}
    v_add_u32 v9, 4096, v9
    s_sub_u32 s38, s38, 1
    s_cmp_lg_u32 s38, 0
    s_cbranch_scc1 P2_GEN
    v_lshl_add_u32 v9, v5, 16, v6
    s_lshr_b32 s38, s34, 1
    s_lshl_b32 s38, s38, 12
    s_and_b32 s39, s34, 1
    s_lshl_b32 s39, s39, 6
    s_add_u32 s38, s38, s39
    s_lshl_b32 s39, s33, 7
    s_add_u32 s38, s38, s39
    s_add_u32 s38, s38, {V_OFF}
    s_waitcnt lgkmcnt(0)
    s_barrier
    s_cmp_eq_u32 s34, 15
    s_cbranch_scc1 P2_END
    s_mov_b32 s40, 0
    P2_PASS:
    """)
    lg = LG(A, "lgkmcnt", 15)
    NB = 8
    def rd(n):
        A(f"ds_read_b128 {vr(AB+4*(n%NB),4)}, v3 offset:{1024*n}"); lg.issue(n)
    for n in range(NB): rd(n)
    A("""
    s_cmp_eq_u32 s40, 0
    s_waitcnt vmcnt(32)
    s_cbranch_scc1 P2_MM
    s_waitcnt vmcnt(0)
    """)
    for idx in range(16):
        T = 10 + 2*(idx & 1)
        cmul(A, T, ACC + 2*idx, WB + 2*idx, T)
        A(f"v_cvt_pk_bf16_f32 v{ZB+idx}, v{T}, -v{T+1}")
    A("P2_MM:")
    for n in range(32):
        mu, u = n >> 2, n & 3
        lg.wait(n)
        c = "0" if u == 0 else vr(ACC + 4*mu, 4)
        A(f"v_mfma_f32_16x16x32_bf16 {vr(ACC+4*mu,4)}, {vr(AB+4*(n%NB),4)}, {vr(ZB+4*u,4)}, {c}")
        if n + NB < 32: rd(n + NB)
    A("""
    s_add_u32 s40, s40, 1
    s_cmp_lt_u32 s40, 2
    s_cbranch_scc1 P2_PASS
    """)
    for idx in range(16):
        A(f"v_cvt_pk_bf16_f32 v{WB+idx}, v{ACC+2*idx}, v{ACC+2*idx+1}")
        A(f"buffer_store_dword v{WB+idx}, v9, s[8:11], s38 offen")
        if idx < 15: A(f"s_add_u32 s38, s38, {32768 if (idx & 1) == 0 else 7*32768}")
    A("s_endpgm")

def gen_p3(A):
    header(A, "p3_kernel")
    FR, ST, A4, G, ACC, BV, GP, TB = 16, 132, 132, 196, 196, 228, 244, 132
    A(f"""
    s_load_dwordx2 s[8:9], s[0:1], 120
    s_load_dwordx2 s[12:13], s[0:1], 104
    s_cmp_ge_u32 s2, 256
    s_cbranch_scc1 P3_END
    v_lshrrev_b32 v2, 6, v0
    v_and_b32 v1, 63, v0
    s_mov_b32 s10, {WS_USED}
    v_readfirstlane_b32 s35, v2
    s_mov_b32 s11, 0x20000
    s_mov_b32 s14, {XB}
    s_mov_b32 s15, 0x20000
    s_and_b32 s33, s2, 63            ; b
    s_lshr_b32 s34, s2, 6
    s_lshl_b32 s34, s34, 2
    s_add_u32 s34, s34, s35          ; delta
    v_and_b32 v4, 31, v1             ; n
    v_lshrrev_b32 v5, 5, v1          ; h
    v_lshlrev_b32 v6, 2, v4
    v_lshl_add_u32 v6, v5, 11, v6    ; V voffset
    s_lshl_b32 s36, s33, 15
    s_lshl_b32 s37, s35, 13
    s_add_u32 s36, s36, s37
    s_add_u32 s36, s36, {V_OFF}
    s_add_u32 s37, s36, 4096
    v_and_b32 v7, 7, v4
    v_lshrrev_b32 v8, 3, v4
    v_lshl_add_u32 v7, v7, 2, v8     ; a
    v_lshl_add_u32 v7, v7, 6, s33    ; s
    v_lshrrev_b32 v9, 1, v6          ; b voffset = h*1024 + 2n
    v_lshlrev_b32 v10, 2, v7
    s_mul_i32 s38, s33, 14
    s_add_u32 s38, s38, s34
    s_lshl_b32 s38, s38, 11
    s_add_u32 s38, s38, {BT_OFF}
    s_mov_b32 s39, {GP_OFF}
    s_waitcnt lgkmcnt(0)
    """)
    for tt in range(2):
        for ci in range(16):
            A(f"buffer_load_dword a{16*tt+ci}, v6, s[8:11], s{36+tt} offen offset:{128*ci}")
    for k in range(7):
        A(f"buffer_load_dword v{GP+k}, v10, s[8:11], s39 offen")
        if k < 6: A("s_add_u32 s39, s39, 8192")
    for r in range(16):
        A(f"buffer_load_short_d16_hi v{BV+r}, v9, s[8:11], s38 offen offset:{64*r}")
    A(f"""
    v_cvt_f32_u32 v11, v7
    v_mul_f32 v11, {fhex(1/2048)}, v11
    v_lshlrev_b32 v12, 4, v5
    v_cvt_f32_u32 v12, v12
    v_mul_f32 v12, v12, v11
    s_mov_b32 s40, 0
    P3_G:
    v_cos_f32 v13, v12
    v_sin_f32 v14, v12
    v_add_f32 v12, v12, v11
    v_cos_f32 v15, v12
    v_sin_f32 v2, v12
    v_add_f32 v12, v12, v11
    s_set_gpr_idx_on s40, gpr_idx(DST)
    v_cvt_pk_bf16_f32 v{G}, v13, v14
    v_cvt_pk_bf16_f32 v{G+16}, -v14, v13
    v_cvt_pk_bf16_f32 v{G+1}, v15, v2
    v_cvt_pk_bf16_f32 v{G+17}, -v2, v15
    s_set_gpr_idx_off
    s_add_u32 s40, s40, 2
    s_cmp_lt_u32 s40, 16
    s_cbranch_scc1 P3_G
    v_bfe_u32 v11, v4, 2, 1
    v_and_b32 v12, 3, v4
    v_lshl_add_u32 v12, v8, 2, v12
    v_lshl_add_u32 v12, v11, 4, v12
    s_lshl_b32 s40, s34, 5
    v_add_u32 v12, s40, v12          ; d
    v_cvt_f32_u32 v11, v12
    v_mul_f32 v11, {fhex(1/448)}, v11 ; kappa
    v_lshlrev_b32 v13, 2, v5
    v_cvt_f32_u32 v13, v13
    v_mul_f32 v13, v13, v11
    """)
    C0, S0, C1, S1 = ST, ST + 8, ST + 16, ST + 24
    for j, kj in enumerate((0, 1, 2, 3, 8, 9, 10, 11)):
        A(f"""
        v_fmamk_f32 v14, v11, {fhex(float(kj))}, v13
        v_fmamk_f32 v15, v11, {fhex(float(kj+16))}, v13
        v_cos_f32 v{C0+j}, v14
        v_sin_f32 v{S0+j}, v14
        v_cos_f32 v{C1+j}, v15
        v_sin_f32 v{S1+j}, v15
        """)
    A(f"""
    v_mul_f32 v14, {fhex(16.0)}, v11
    v_cos_f32 v14, v14
    s_mov_b32 s40, 0
    v_add_f32 v14, v14, v14
    P3_GEN:
    s_set_gpr_idx_on s40, gpr_idx(DST)
    """)
    for k in range(16): A(f"v_cvt_pk_bf16_f32 v{FR+k}, v{ST+2*k}, v{ST+2*k+1}")
    A("s_set_gpr_idx_off")
    for (X, Y) in ((ST, ST + 16), (ST + 16, ST)):
        for k in range(8):
            A(f"v_pk_fma_f32 {vr(X+2*k,2)}, v[14:15], {vr(Y+2*k,2)}, {vr(X+2*k,2)} op_sel_hi:[0,1,1] neg_lo:[0,0,1] neg_hi:[0,0,1]")
    A(f"""
    s_add_u32 s40, s40, 16
    s_cmp_lt_u32 s40, 112
    s_cbranch_scc1 P3_GEN
    v_cmp_eq_u32 vcc, 0, v5
    v_lshlrev_b32 v12, 15, v12
    v_and_b32 v12, 0x8000, v12
    v_or_b32 v12, 0x3f00, v12
    v_cndmask_b32 v{FR+112}, 0, v12, vcc
    v_mov_b32 v12, 0x80
    v_cndmask_b32 v12, 0, v12, vcc
    v_xor_b32 v{FR}, v12, v{FR}
    v_mov_b32 v{FR+113}, 0
    v_mov_b32 v{FR+114}, 0
    v_mov_b32 v{FR+115}, 0
    v_lshlrev_b32 v3, 4, v1          ; lane*16
    s_lshl_b32 s40, s35, 13
    v_add_u32 v2, s40, v3
    """)
    for tt in range(2):
        for u in range(4):
            A(f"s_waitcnt vmcnt({23 + 32 - 16*tt - 4*u - 4})")
            for part in range(2):
                a = A4 + 32*tt + 16*part
                c = "0" if u == 0 else vr(a, 16)
                A(f"v_mfma_f32_32x32x16_bf16 {vr(a,16)}, {vr(16*tt+4*u,4,'a')}, {vr(G+16*part+4*u,4)}, {c}")
    def cvtw(tt):
        for part in range(2):
            for u in range(2):
                a = A4 + 32*tt + 16*part + 8*u
                for k in range(4): A(f"v_cvt_pk_bf16_f32 v{a+k}, v{a+2*k}, v{a+2*k+1}")
                A(f"ds_write_b128 v2, {vr(a,4)} offset:{1024*((2*tt+u)*2+part)}")
    cvtw(0); cvtw(1)
    A("s_waitcnt vmcnt(16)")
    for k in range(1, 7): A(f"v_add_f32 v{GP}, v{GP}, v{GP+k}")
    A(f"""
    v_cvt_pk_bf16_f32 v{GP}, v{GP}, v{GP}
    v_lshlrev_b32 v{GP}, 16, v{GP}
    v_mul_f32 v{GP}, {fhex(-LOG2E)}, v{GP}
    v_exp_f32 v{GP}, v{GP}
    v_add_f32 v{GP}, 1.0, v{GP}
    v_rcp_f32 v{GP}, v{GP}
    v_cvt_pk_bf16_f32 v{GP}, v{GP}, v{GP}
    v_lshlrev_b32 v{GP}, 16, v{GP}      ; g
    v_sub_f32 v{GP+2}, 1.0, v{GP}
    v_cvt_pk_bf16_f32 v{GP+2}, v{GP+2}, v{GP+2}
    v_lshlrev_b32 v{GP+2}, 16, v{GP+2}  ; 1-g
    v_mul_f32 v{GP}, {fhex(2/917504)}, v{GP}
    v_mul_u32_u24 v7, 896, v7
    v_lshl_add_u32 v7, v5, 5, v7
    s_lshl_b32 s40, s34, 6
    s_waitcnt lgkmcnt(0)
    s_barrier
    s_cmp_ge_u32 s34, 14
    s_cbranch_scc1 P3_END
    """)
    lg = LG(A, "lgkmcnt", 15)
    NB = 8
    def rd(n):
        A(f"ds_read_b128 {vr(TB+4*(n%NB),4)}, v3 offset:{1024*n}"); lg.issue(n)
    for n in range(NB): rd(n)
    for n in range(29):
        lg.wait(n)
        c = "0" if n == 0 else vr(ACC, 16)
        A(f"v_mfma_f32_32x32x16_bf16 {vr(ACC,16)}, {vr(FR+4*n,4)}, {vr(TB+4*(n%NB),4)}, {c}")
        if n + NB < 29: rd(n + NB)
        if n == 20: A("s_waitcnt vmcnt(0)")
        if 20 <= n < 28:
            k = n - 20
            A(f"v_pk_mul_f32 {vr(BV+2*k,2)}, {vr(BV+2*k,2)}, {vr(GP+2,2)} op_sel_hi:[1,0]")
    for k in range(8):
        A(f"v_pk_fma_f32 {vr(BV+2*k,2)}, {vr(ACC+2*k,2)}, {vr(GP,2)}, {vr(BV+2*k,2)} op_sel_hi:[1,0,1]")
        A(f"v_cvt_pk_bf16_f32 v{TB+k}, v{BV+2*k}, v{BV+2*k+1}")
        if k == 3: A(f"buffer_store_dwordx4 {vr(TB,4)}, v7, s[12:15], s40 offen")
    A(f"buffer_store_dwordx4 {vr(TB+4,4)}, v7, s[12:15], s40 offen offset:16")
    A("P3_END:\ns_endpgm")
```

```python
import numpy as np
S, D, N = 2048, 448, 256
def bf2f(a): return (a.astype(np.uint16).astype(np.uint32) << 16).view(np.float32)
def f2bf(x):
    u = np.asarray(x, dtype=np.float32).view(np.uint32)
    return (((u + 0x7FFF + ((u >> 16) & 1)) >> 16) & 0xFFFF).astype(np.uint16)
def rbf(x): return bf2f(f2bf(x))

Z_OFF = 0x000000; V_OFF = 0x200000; XT_OFF = 0x400080; KR_OFF = 0x600000; BT_OFF = 0x800000; GP_OFF = 0xA00000
ROWS = 4224
WS_USED = 0xB00000

class Model:
    def __init__(self, path):
        r = np.load(path)
        f = lambda n: bf2f(r[n]).astype(np.float64)
        self.x = f("A_x").reshape(S, D)
        self.W = f("A_w_r") + 1j * f("A_w_i")
        self.out = f("out").reshape(S, D)
        dt = rbf(np.exp(f("B_log_dt").astype(np.float32))).astype(np.float64)[:, None]
        z = dt * (f("B_A_re") + 1j * f("B_A_im"))
        CB = (f("B_C_re") + 1j * f("B_C_im")) * dt * (f("B_B_re") + 1j * f("B_B_im"))
        lb = rbf(np.arange(S).astype(np.float32)).astype(np.float64)
        ul, inv = np.unique(lb, return_inverse=True)
        Kd = np.empty((D, len(ul)))
        for d in range(D):
            Kd[d] = (CB[d][:, None] * np.exp(z[d][:, None] * ul[None, :])).sum(0).real
        self.K = Kd[:, inv]
        self.Kp = self.K.copy(); self.Kp[:, 0] += f("B_Dskip")
        self.gw = f("gate_w")
        k2 = np.arange(240)
        FD = np.exp(-2j * np.pi * np.outer(np.arange(D), k2) / D)
        X1 = self.x @ FD
        X1r = X1.reshape(32, 64, 240)
        c = np.arange(32); a = np.arange(32); b = np.arange(64)
        s = 64 * a[:, None] + b[None, :]
        tw = np.exp(-2j * np.pi * c[:, None, None] * s[None] / S)
        self.Z = np.einsum("cab,abk->cbk", tw, X1r)
        F64 = np.exp(-2j * np.pi * np.outer(b, b) / 64)
        X = np.einsum("eb,cbk->cek", F64, self.Z)[:, :, :225]
        Wr = self.W.reshape(64, 32, 225).transpose(1, 0, 2)
        Y = X * Wr
        self.V = np.einsum("be,cek->cbk", F64.conj(), Y)
        T = np.einsum("cab,cbk->abk", tw.conj(), self.V).reshape(S, 225)
        wt = np.full(225, 2.0); wt[0] = 1; wt[224] = 1
        self.a = ((T * wt) @ FD[:, :225].conj().T).real / (S * D)
        L2 = 2 * S
        self.b = np.fft.irfft(np.fft.rfft(self.Kp, L2, axis=1) * np.fft.rfft(self.x.T, L2, axis=1), L2, axis=1)[:, :S].T
        self.gs = self.x @ self.gw
        g = 1 / (1 + np.exp(-self.gs))[:, None]
        self.mine = g * self.a + (1 - g) * self.b
if __name__ == "__main__":
    m = Model("ref0.npz")
    e = np.abs(m.mine - m.out)
    print("max err model vs ref", e.max(), "rms", np.sqrt((e**2).mean()), "thr", np.abs(m.out).max() * 8 / 256)
    print("a rms", m.a.std(), "b rms", m.b.std(), "K rms", m.K.std(), "Z rms", np.abs(m.Z).std(), "V", np.abs(m.V).std())
    np.savez("model0.npz", Z=m.Z.astype(np.complex64), V=m.V.astype(np.complex64), Kp=m.Kp.astype(np.float32), b=m.b.astype(np.float32), a=m.a.astype(np.float32), gs=m.gs.astype(np.float32))
```

```python
import sys, math
sys.path.insert(0, "work")
from asmlib import *
from model import Z_OFF, V_OFF, XT_OFF, KR_OFF, BT_OFF, GP_OFF, ROWS, WS_USED

LOG2E = 1.4426950408889634
XB = 2048 * 448 * 2

class LG:
    def __init__(self, A, name, maxc):
        self.A = A; self.q = []; self.name = name; self.maxc = maxc
    def issue(self, tag): self.q.append(tag)
    def wait(self, tag):
        if tag not in self.q: return
        i = len(self.q) - 1 - self.q[::-1].index(tag)
        n = len(self.q) - 1 - i
        n = min(n, self.maxc)
        self.A(f"s_waitcnt {self.name}({n})")
        self.q = self.q[len(self.q) - n:] if n > 0 else []
    def drain(self):
        self.A(f"s_waitcnt {self.name}(0)"); self.q = []

def cmul(A, dst, a, e, T):
    A(f"v_pk_mul_f32 {vr(T,2)}, {vr(a,2)}, {vr(e,2)} op_sel:[0,0] op_sel_hi:[0,1]")
    A(f"v_pk_fma_f32 {vr(dst,2)}, {vr(a,2)}, {vr(e,2)}, {vr(T,2)} op_sel:[1,1,0] op_sel_hi:[1,0,1] neg_lo:[1,0,0]")

def header(A, name):
    A(f".globl {name}\n.p2align 8\n.type {name},@function\n{name}:")

def gen_p1(A):
    header(A, "p1_kernel")
    A(f"""
    s_load_dwordx2 s[4:5], s[0:1], 0
    s_load_dwordx2 s[8:9], s[0:1], 120
    s_load_dwordx16 s[16:31], s[0:1], 32
    s_load_dwordx2 s[12:13], s[0:1], 96
    v_lshrrev_b32 v2, 6, v0
    v_and_b32 v1, 63, v0
    s_mov_b32 s6, {XB}
    v_readfirstlane_b32 s35, v2
    s_mov_b32 s7, 0x20000
    s_mov_b32 s10, {WS_USED}
    s_mov_b32 s11, 0x20000
    s_cmp_ge_u32 s2, 312
    s_cbranch_scc1 P1_KGEN
    s_cmp_ge_u32 s2, 256
    s_cbranch_scc1 P1_XT
    """)
    FR, ACC, F0, F1, AB, S0 = 16, 72, 88, 96, 88, 112
    S1 = FR; ACC2 = 88; PB = 104
    XL = 912; SM = 32 * XL
    A(f"""
    s_and_b32 s33, s2, 63
    s_lshr_b32 s34, s2, 6
    v_lshlrev_b32 v3, 4, v1
    s_lshl_b32 s36, s35, 9
    s_add_u32 s36, s36, s33
    s_mul_i32 s36, s36, 896
    s_mul_i32 m0, s35, {8*XL}
    s_mov_b32 exec_hi, 0x00ffffff
    s_waitcnt lgkmcnt(0)
    """)
    for i in range(8):
        A("buffer_load_dwordx4 v3, s[4:7], s36 offen lds")
        if i < 7:
            A(f"s_add_u32 m0, m0, {XL}\ns_add_u32 s36, s36, {64*896}")
    A(f"""
    s_mov_b32 exec_hi, -1
    s_lshl_b32 s38, s34, 2
    s_add_u32 s38, s38, s35          ; tau
    s_lshl_b32 s39, s38, 4
    v_and_b32 v7, 15, v1             ; m / col
    v_add_u32 v4, s39, v7
    v_cvt_f32_u32 v4, v4
    v_mul_f32 v4, {fhex(1/448)}, v4  ; kappa
    v_and_b32 v5, 32, v1
    v_cvt_f32_u32 v5, v5
    v_mul_f32 v5, {fhex(0.25)}, v5   ; 8h
    v_and_b32 v6, 16, v1
    v_cvt_f32_u32 v6, v6
    v_mul_f32 v6, {fhex(1/64)}, v6   ; phi
    v_fma_f32 v8, v4, v5, v6         ; base
    """)
    for j in range(8):
        A(f"v_fmamk_f32 v9, v4, {fhex(float(j))}, v8\nv_fmamk_f32 v10, v4, {fhex(float(j+16))}, v8")
        A(f"v_cos_f32 v{F0+j}, v9\nv_cos_f32 v{F1+j}, v10")
    A(f"""
    v_mul_f32 v9, {fhex(16.0)}, v4
    v_cos_f32 v12, v9
    s_mov_b32 s40, 0
    v_add_f32 v12, v12, v12
    P1_GEN:
    s_set_gpr_idx_on s40, gpr_idx(DST)
    """)
    for k in range(4): A(f"v_cvt_pk_bf16_f32 v{FR+k}, v{F0+2*k}, v{F0+2*k+1}")
    for k in range(4): A(f"v_cvt_pk_bf16_f32 v{FR+4+k}, v{F1+2*k}, v{F1+2*k+1}")
    A("s_set_gpr_idx_off")
    for (X, Y) in ((F0, F1), (F1, F0)):
        for k in range(4):
            A(f"v_pk_fma_f32 {vr(X+2*k,2)}, v[12:13], {vr(Y+2*k,2)}, {vr(X+2*k,2)} op_sel_hi:[0,1,1] neg_lo:[0,0,1] neg_hi:[0,0,1]")
    A(f"""
    s_add_u32 s40, s40, 8
    s_cmp_lt_u32 s40, 56
    s_cbranch_scc1 P1_GEN
    s_lshl_b32 s41, s35, 3
    v_lshrrev_b32 v9, 1, v7
    v_add_u32 v9, s41, v9
    v_cvt_f32_u32 v9, v9             ; c
    v_cvt_f32_u32 v10, s33           ; b
    v_mul_f32 v10, {fhex(1/2048)}, v10
    v_fmamk_f32 v10, v5, {fhex(1/64)}, v10
    v_and_b32 v11, 1, v1
    v_cvt_f32_u32 v11, v11
    v_fma_f32 v11, v11, 0.5, 0
    v_fma_f32 v11, v11, 0.5, -v6
    v_fma_f32 v10, v9, v10, v11      ; base
    v_mul_f32 v9, {fhex(1/32)}, v9   ; step
    """)
    for j, aj in enumerate((0, 1, 2, 3, 8, 9, 10, 11)):
        A(f"v_fmamk_f32 v11, v9, {fhex(float(aj))}, v10\nv_cos_f32 v{F0+j}, v11")
    for k in range(4): A(f"v_cvt_pk_bf16_f32 v{F1+k}, v{F0+2*k}, v{F0+2*k+1}")
    A(f"""
    v_lshlrev_b32 v9, 4, v0
    ds_write_b128 v9, {vr(F1,4)} offset:{SM}
    v_and_b32 v9, 31, v1
    v_mul_u32_u24 v9, {XL}, v9
    v_lshrrev_b32 v10, 5, v1
    v_lshl_add_u32 v9, v10, 4, v9
    v_lshlrev_b32 v10, 31, v1
    v_lshrrev_b32 v11, 16, v10
    v_or_b32 v10, v10, v11           ; k2 odd
    v_lshlrev_b32 v11, 30, v1
    v_and_b32 v11, 0x80000000, v11
    v_lshrrev_b32 v12, 16, v11
    v_or_b32 v11, v11, v12           ; c odd
    v_lshrrev_b32 v12, 4, v1
    v_lshlrev_b32 v12, 17, v12
    v_lshl_add_u32 v12, v7, 2, v12
    s_lshl_b32 s42, s38, 12
    s_lshl_b32 s43, s33, 6
    s_add_u32 s42, s42, s43
    s_waitcnt vmcnt(0) lgkmcnt(0)
    s_barrier
    s_cmp_eq_u32 s38, 15
    s_cbranch_scc1 P1_END
    """)
    lg = LG(A, "lgkmcnt", 15)
    NB = 6
    def rd(t):
        A(f"ds_read_b128 {vr(AB+4*(t%NB),4)}, v9 offset:{32*t}"); lg.issue(t)
    for t in range(NB): rd(t)
    for t in range(28):
        lg.wait(t)
        c = "0" if t == 0 else vr(ACC, 16)
        A(f"v_mfma_f32_32x32x16_bf16 {vr(ACC,16)}, {vr(AB+4*(t%NB),4)}, {vr(FR+4*(t%14),4)}, {c}")
        if t + NB < 28: rd(t + NB)
        elif t + NB - 28 < 4:
            mu = t + NB - 28
            A(f"ds_read_b128 {vr(S0+4*mu,4)}, v3 offset:{SM+1024*mu}"); lg.issue(f"s{mu}")
        if t < 14:
            for k in range(4): A(f"v_xor_b32 v{FR+4*t+k}, v10, v{FR+4*t+k}")
    lg.drain()
    for k in range(16): A(f"v_xor_b32 v{S1+k}, v11, v{S0+k}")
    for k in range(8): A(f"v_cvt_pk_bf16_f32 v{PB+k}, v{ACC+2*k}, v{ACC+2*k+1}")
    for mu in range(4):
        A(f"v_mfma_f32_16x16x32_bf16 {vr(ACC2+4*mu,4)}, {vr(S0+4*mu,4)}, {vr(PB,4)}, 0")
    for mu in range(4):
        A(f"v_mfma_f32_16x16x32_bf16 {vr(ACC2+4*mu,4)}, {vr(S1+4*mu,4)}, {vr(PB+4,4)}, {vr(ACC2+4*mu,4)}")
    for mu in range(4):
        for p in range(2):
            A(f"v_cvt_pk_bf16_f32 v{ACC+2*mu+p}, v{ACC2+4*mu+2*p}, v{ACC2+4*mu+2*p+1}")
            A(f"buffer_store_dword v{ACC+2*mu+p}, v12, s[8:11], s42 offen")
            if not (mu == 3 and p == 1):
                A(f"s_add_u32 s42, s42, {65536 if p == 0 else 7*65536}")
    A("P1_END:\ns_endpgm")

    IN, OUT, GW, PS = 8, 40, 72, 76
    A(f"""
    P1_XT:
    s_sub_u32 s33, s2, 256
    s_lshr_b32 s34, s33, 3           ; db
    s_and_b32 s33, s33, 7
    s_lshl_b32 s33, s33, 2
    s_add_u32 s33, s33, s35          ; lb
    v_and_b32 v2, 7, v1              ; lg
    v_lshrrev_b32 v3, 3, v1          ; dg
    v_mul_u32_u24 v4, {8*896}, v2
    v_lshl_add_u32 v4, v3, 4, v4
    s_mul_i32 s36, s33, {64*896}
    s_lshl_b32 s37, s34, 7
    s_add_u32 s36, s36, s37
    s_add_u32 s38, s36, 3584
    v_lshl_add_u32 v5, v3, 4, s37
    s_waitcnt lgkmcnt(0)
    """)
    for i in range(8):
        A(f"buffer_load_dwordx4 {vr(IN+4*i,4)}, v4, s[4:7], {'s36' if i < 4 else 's38'} offen offset:{896*(i%4)}")
    A(f"""
    global_load_dwordx4 {vr(GW,4)}, v5, s[12:13]
    s_mov_b32 s40, 0x05040100
    s_mov_b32 s41, 0x07060302
    v_mul_u32_u24 v6, {8*ROWS}, v3
    v_lshl_add_u32 v6, v2, 4, v6
    s_mul_i32 s42, s34, {64*ROWS}
    s_add_u32 s42, s42, {XT_OFF}
    s_cmp_lg_u32 s33, 0
    s_cbranch_scc1 P1_XT_NOPAD
    v_mul_u32_u24 v7, {ROWS}, v1
    v_mov_b32 v{OUT}, 0
    v_mov_b32 v{OUT+1}, 0
    v_mov_b32 v{OUT+2}, 0
    v_mov_b32 v{OUT+3}, 0
    s_sub_u32 s43, s42, 16
    buffer_store_dwordx4 {vr(OUT,4)}, v7, s[8:11], s43 offen
    P1_XT_NOPAD:
    s_lshl_b32 s43, s33, 7
    s_add_u32 s42, s42, s43
    """)
    for i in range(8): A(f"v_mov_b32 v{PS+i}, 0")
    A("s_waitcnt vmcnt(0)")
    for k in range(4):
        for hi in range(2):
            ch = 2 * k + hi
            for m in range(4):
                A(f"v_perm_b32 v{OUT+4*ch+m}, v{IN+4*(2*m+1)+k}, v{IN+4*(2*m)+k}, s{40+hi}")
            A(f"buffer_store_dwordx4 {vr(OUT+4*ch,4)}, v6, s[8:11], s42 offen")
            if ch < 7: A(f"s_add_u32 s42, s42, {ROWS}")
    for k in range(4):
        for i in range(8):
            A(f"v_dot2c_f32_bf16 v{PS+i}, v{IN+4*i+k}, v{GW+k}")
    for i in range(4): A(f"v_permlane32_swap_b32 v{PS+i}, v{PS+i+4}")
    for i in range(4): A(f"v_add_f32 v{PS+i}, v{PS+i}, v{PS+i+4}")
    for i in range(2): A(f"v_permlane16_swap_b32 v{PS+i}, v{PS+i+2}")
    for i in range(2): A(f"v_add_f32 v{PS+i}, v{PS+i}, v{PS+i+2}")
    A(f"""
    v_and_b32 v7, 8, v1
    v_cmp_ne_u32 vcc, 0, v7
    v_add_f32_dpp v{PS+2}, v{PS}, v{PS} row_ror:8 row_mask:0xf bank_mask:0xf
    v_add_f32_dpp v{PS+3}, v{PS+1}, v{PS+1} row_ror:8 row_mask:0xf bank_mask:0xf
    v_lshl_add_u32 v7, v2, 3, v3
    v_lshlrev_b32 v7, 2, v7
    v_cndmask_b32 v{PS}, v{PS+2}, v{PS+3}, vcc
    s_lshl_b32 s42, s34, 13
    s_lshl_b32 s43, s33, 8
    s_add_u32 s42, s42, s43
    s_add_u32 s42, s42, {GP_OFF}
    buffer_store_dword v{PS}, v7, s[8:11], s42 offen
    s_endpgm
    """)

    E1, E8, E256, Q, T, CV, AF, BF, KA, GA = 10, 12, 14, 16, 32, 34, 40, 72, 104, 120
    RS = 272; WR = 32 * RS; TAB = 3072
    A(f"""
    P1_KGEN:
    s_cmp_ge_u32 s2, 760
    s_cbranch_scc1 P1_END
    s_sub_u32 s33, s2, 312           ; d
    s_lshl_b32 s34, s33, 9
    v_lshl_add_u32 v36, v0, 1, s34
    s_lshl_b32 s36, s33, 1
    v_mov_b32 v37, s36
    s_waitcnt lgkmcnt(0)
    global_load_short_d16_hi v8, v37, s[28:29]
    global_load_short_d16_hi v2, v36, s[16:17]
    global_load_short_d16_hi v3, v36, s[18:19]
    global_load_short_d16_hi v4, v36, s[20:21]
    global_load_short_d16_hi v5, v36, s[22:23]
    global_load_short_d16_hi v6, v36, s[24:25]
    global_load_short_d16_hi v7, v36, s[26:27]
    global_load_short_d16_hi v9, v37, s[30:31]
    v_sub_u32 v36, 255, v0           ; k
    v_lshlrev_b32 v37, 19, v36
    v_and_b32 v37, 0x80000, v37
    v_or_b32 v37, 0x88800000, v37
    v_mov_b32 v38, 0x88444000
    v_cmp_gt_u32 vcc, 128, v36
    v_cndmask_b32 v37, v37, v38, vcc
    v_mov_b32 v38, 0x86444200
    v_cmp_gt_u32 vcc, 64, v36
    v_cndmask_b32 v37, v37, v38, vcc
    v_mov_b32 v38, 0x76543210
    v_cmp_gt_u32 vcc, 32, v36
    v_cndmask_b32 v37, v37, v38, vcc
    v_lshlrev_b32 v36, 4, v36
    """)
    for j in range(8):
        A(f"v_bfe_u32 v38, v37, {4*(7-j)}, 4\nv_lshl_add_u32 v{GA+j}, v38, 1, v36")
    A(f"""
    s_mul_i32 s37, s35, {WR}
    s_mov_b32 m0, s37
    v_and_b32 v36, 31, v1
    v_mul_u32_u24 v37, {RS}, v36
    v_lshrrev_b32 v38, 5, v1
    v_lshl_add_u32 v37, v38, 4, v37
    v_add_u32 v37, s37, v37
    s_waitcnt vmcnt(7)
    v_mul_f32 v8, {fhex(LOG2E)}, v8
    v_exp_f32 v8, v8
    v_cvt_pk_bf16_f32 v8, v8, v8
    v_lshlrev_b32 v8, 16, v8         ; dt
    s_waitcnt vmcnt(5)
    v_mul_f32 v2, v8, v2
    v_mul_f32 v3, v8, v3
    v_mul_f32 v2, {fhex(LOG2E)}, v2
    v_mul_f32 v3, 0.15915494, v3
    """)
    for (E, mlt) in ((E1, 1.0), (E256, 256.0), (E8, 8.0)):
        A(f"""
        v_mul_f32 v{T}, {fhex(mlt)}, v2
        v_mul_f32 v{T+1}, {fhex(mlt)}, v3
        v_exp_f32 v{T}, v{T}
        v_fract_f32 v{T+1}, v{T+1}
        v_cos_f32 v{E}, v{T+1}
        v_sin_f32 v{E+1}, v{T+1}
        v_pk_mul_f32 {vr(E,2)}, {vr(E,2)}, {vr(T,2)} op_sel_hi:[1,0]
        """)
    A(f"""
    s_waitcnt vmcnt(1)
    v_pk_mul_f32 v[4:5], v[4:5], v[8:9] op_sel_hi:[1,0]
    """)
    cmul(A, Q, 6, 4, T)
    cnt = [0]
    def putq(row, reg):
        c = CV + (cnt[0] & 1); cnt[0] += 1
        A(f"v_cvt_pk_bf16_f32 v{c}, v{reg}, -v{reg+1}\nds_write_addtid_b32 v{c} offset:{RS*row}")
    putq(0, Q)
    for r in range(1, 8):
        cmul(A, Q + 2*r, Q + 2*(r-1), E1, T); putq(r, Q + 2*r)
    for i, r in enumerate((0, 2, 4, 6)):
        cmul(A, Q + 2*r, Q + 2*r, E256, T); putq(8 + i, Q + 2*r)
    for i in range(2):
        for jj, r in enumerate((0, 4)):
            cmul(A, Q + 2*r, Q + 2*r, E256, T); putq(12 + 2*i + jj, Q + 2*r)
    for i in range(5):
        cmul(A, Q, Q, E256, T); putq(16 + i, Q)
    for u in range(8): A(f"ds_read_b128 {vr(AF+4*u,4)}, v37 offset:{32*u}")
    A(f"""
    v_mov_b32 v{Q}, 1.0
    v_mov_b32 v{Q+1}, 0
    s_mov_b32 s38, 8
    P1_KP:
    """)
    for i in range(4):
        c = CV + (i & 1)
        A(f"v_cvt_pk_bf16_f32 v{c}, v{Q}, v{Q+1}")
        cmul(A, Q, Q, E8, T)
        A(f"ds_write_addtid_b32 v{c} offset:{RS*i}")
    A(f"""
    s_add_u32 m0, m0, {4*RS}
    s_sub_u32 s38, s38, 1
    s_cmp_lg_u32 s38, 0
    s_cbranch_scc1 P1_KP
    """)
    for u in range(8): A(f"ds_read_b128 {vr(BF+4*u,4)}, v37 offset:{32*u}")
    A(f"""
    s_lshl_b32 s38, s35, 1
    v_add_u32 v38, s38, v38          ; gamma
    v_lshlrev_b32 v2, 2, v38         ; 4*gamma
    v_lshlrev_b32 v3, v38, 64
    v_cmp_le_u32 vcc, 2, v38
    v_cndmask_b32 v3, v2, v3, vcc
    v_lshl_add_u32 v3, v36, 3, v3
    v_lshlrev_b32 v3, 1, v3
    s_mov_b32 s38, 0x082100
    s_mov_b32 s39, 0x198211
    v_bfe_u32 v4, s38, v2, 4
    v_bfe_u32 v5, s39, v2, 4
    v_lshlrev_b32 v4, v4, 2
    v_lshlrev_b32 v5, v5, 2
    v_add_u32 v6, v3, v5             ; r=2
    v_add_u32 v5, v6, v4             ; r=3
    v_add_u32 v4, v3, v4             ; r=1
    v_lshlrev_b32 v7, 4, v1
    v_add_u32 v7, s37, v7
    v_lshlrev_b32 v2, 4, v0
    v_cmp_eq_u32 vcc, 0, v0
    s_waitcnt vmcnt(0)
    v_cndmask_b32 v9, 0, v9, vcc
    """)
    for u in range(8):
        A(f"s_waitcnt lgkmcnt({7-u})")
        c = "0" if u == 0 else vr(KA, 16)
        A(f"v_mfma_f32_32x32x16_bf16 {vr(KA,16)}, {vr(AF+4*u,4)}, {vr(BF+4*u,4)}, {c}")
    for i in range(3): A(f"ds_write_b128 v7, {vr(KA+4*i,4)} offset:{1024*i}")
    A(f"""
    s_mul_i32 s38, s33, {ROWS}
    s_add_u32 s38, s38, {KR_OFF}
    s_waitcnt lgkmcnt(0)
    s_barrier
    s_cmp_eq_u32 s35, 3
    s_cbranch_scc1 P1_K2
    """)
    for s_ in range(4): A(f"ds_read_b128 {vr(AF+4*s_,4)}, v2 offset:{WR*s_}")
    A("s_waitcnt lgkmcnt(2)")
    A(f"v_add_f32 v{AF}, v9, v{AF}")
    for k in range(2): A(f"v_pk_add_f32 {vr(AF+2*k,2)}, {vr(AF+2*k,2)}, {vr(AF+4+2*k,2)}")
    A("s_waitcnt lgkmcnt(0)")
    for k in range(2): A(f"v_pk_add_f32 {vr(AF+8+2*k,2)}, {vr(AF+8+2*k,2)}, {vr(AF+12+2*k,2)}")
    for k in range(2): A(f"v_pk_add_f32 {vr(AF+2*k,2)}, {vr(AF+2*k,2)}, {vr(AF+8+2*k,2)}")
    A(f"""
    v_cvt_pk_bf16_f32 v{AF}, v{AF}, v{AF+1}
    v_cvt_pk_bf16_f32 v{AF+2}, v{AF+2}, v{AF+3}
    ds_write_b16 v3, v{AF} offset:{TAB}
    ds_write_b16_d16_hi v4, v{AF} offset:{TAB}
    ds_write_b16 v6, v{AF+2} offset:{TAB}
    ds_write_b16_d16_hi v5, v{AF+2} offset:{TAB}
    s_waitcnt lgkmcnt(0)
    P1_K2:
    s_barrier
    """)
    for j in range(8):
        A(f"ds_read_u16_d16{'_hi' if j & 1 else ''} v{BF+j}, v{GA+j} offset:{TAB}")
    for k in range(4): A(f"v_mov_b32 v{AF+k}, 0")
    for k in range(4):
        A(f"s_waitcnt lgkmcnt({6-2*k})\nv_or_b32 v{BF+8+k}, v{BF+2*k}, v{BF+2*k+1}")
    A(f"""
    buffer_store_dwordx4 {vr(BF+8,4)}, v2, s[8:11], s38 offen
    s_add_u32 s38, s38, 4096
    s_and_b64 exec, exec, vcc
    s_cbranch_execz P1_END
    buffer_store_dwordx4 {vr(AF,4)}, v2, s[8:11], s38 offen
    s_endpgm
    """)

def desc(name, vg, sg=64, acc=None):
    if acc is None: acc = (vg + 3) // 4 * 4
    return f""".p2align 6
.amdhsa_kernel {name}
  .amdhsa_next_free_vgpr {vg}
  .amdhsa_next_free_sgpr {sg}
  .amdhsa_accum_offset {acc}
  .amdhsa_group_segment_fixed_size 0
  .amdhsa_kernarg_size 128
  .amdhsa_user_sgpr_count 2
  .amdhsa_user_sgpr_kernarg_segment_ptr 1
  .amdhsa_system_sgpr_workgroup_id_x 1
.end_amdhsa_kernel
"""

def build(path, which=("p1", "p2", "p3")):
    import gen23
    L = {"p1": ("p1_kernel", 760, 34816, gen_p1, 128, None),
         "p2": ("p2_kernel", 576, 32768, gen23.gen_p2, 128, None),
         "p3": ("p3_kernel", 256, 32768, gen23.gen_p3, 288, 256)}
    s = "; gated mix of GFNet spectral filter and S4 convolution: three launches (see generator notes in comments)\n"
    for w in which:
        n, g, lds, _, _, _ = L[w]
        s += f"; @launch kernel={n} grid=({g},1,1) block=(256,1,1) lds={lds}\n"
    s += '.amdgcn_target "amdgcn-amd-amdhsa--gfx950"\n.text\n'
    for w in which:
        A = Asm(); L[w][3](A); s += A.text()
    s += '.section .rodata,"a"\n'
    for w in which:
        s += desc(L[w][0], L[w][4], acc=L[w][5])
    open(path, "w").write(s)

if __name__ == "__main__":
    which = sys.argv[2].split(",") if len(sys.argv) > 2 else ("p1", "p2", "p3")
    build(sys.argv[1], which)
```

```python
import re, struct

def f2u(x):
    return struct.unpack("<I", struct.pack("<f", x))[0]
def fhex(x):
    return "0x%08x" % f2u(x)

REG_RE = re.compile(r"(?<![\w.])([vas])(?:(\d+)|\[(\d+):(\d+)\])(?![\w])")
TRANS = ("v_exp_f32", "v_log_f32", "v_rcp_f32", "v_rsq_f32", "v_sqrt_f32", "v_sin_f32", "v_cos_f32")

def regs_of(operand):
    out = []
    for m in REG_RE.finditer(operand):
        k = m.group(1)
        if m.group(2) is not None:
            out.append((k, int(m.group(2))))
        else:
            out += [(k, i) for i in range(int(m.group(3)), int(m.group(4)) + 1)]
    for w in ("vcc", "exec", "m0"):
        if re.search(r"(?<![\w.])%s(_lo|_hi)?(?![\w])" % w, operand):
            out.append((w, 0))
    return out

def split_ops(s):
    ops, depth, cur = [], 0, ""
    for ch in s:
        if ch in "[(": depth += 1
        if ch in "])": depth -= 1
        if ch == "," and depth == 0:
            ops.append(cur.strip()); cur = ""
        else:
            cur += ch
    if cur.strip(): ops.append(cur.strip())
    return ops

class Ins:
    def __init__(self, text):
        self.text = text
        t = text.split(";")[0].strip()
        self.label = t.endswith(":")
        self.directive = t.startswith(".")
        self.empty = (t == "")
        self.op = ""; self.rd = []; self.wr = []
        self.kind = None
        if self.label or self.directive or self.empty: return
        parts = t.split(None, 1)
        op = parts[0]; self.op = op
        ops = split_ops(parts[1]) if len(parts) > 1 else []
        mods = ""
        if ops:
            l = ops[-1].split(None, 1)
            if len(l) > 1:
                ops[-1] = l[0]; mods = l[1]
        self.mods = mods; self.ops = ops
        R = [regs_of(o) for o in ops]
        flat = lambda L: [x for r in L for x in r]
        if op.startswith("v_mfma"):
            self.kind = "mfma"
            self.passes = 8 if "32x32x16" in op else 4
            assert ("32x32x16" in op or "16x16x32" in op), op
            self.wr = R[0]; self.srcab = R[1] + R[2]; self.srcc = R[3]; self.rd = self.srcab + self.srcc
        elif op.startswith("v_"):
            self.kind = "valu"
            self.trans = any(op.startswith(x) for x in TRANS)
            self.dpp = ("_dpp" in op) or ("row_" in mods) or ("quad_perm" in mods)
            self.permlane = op.startswith("v_permlane")
            self.dot = op.startswith("v_dot")
            self.lane = op.startswith("v_readlane") or op.startswith("v_readfirstlane") or op.startswith("v_writelane")
            if self.permlane:
                self.wr = R[0] + R[1]; self.rd = R[0] + R[1]
            elif op.startswith("v_cmpx"):
                self.wr = R[0] + [("exec", 0)]; self.rd = flat(R[1:])
            elif op.startswith("v_add_co") or op.startswith("v_sub_co") or op.startswith("v_addc_co") or op.startswith("v_subb_co"):
                self.wr = R[0] + R[1]; self.rd = flat(R[2:])
            else:
                self.wr = R[0]; self.rd = flat(R[1:])
                if op.startswith("v_fmac") or op.startswith("v_dot2c") or op.startswith("v_pk_fmac") or self.dpp:
                    self.rd = self.rd + R[0]
        elif op.startswith("buffer_") or op.startswith("global_"):
            self.kind = "vmem"
            self.lds = (" lds" in (" " + mods)) or ("_lds_" in op)
            if "store" in op or "atomic" in op:
                self.rd = flat(R)
                self.wide_store = ("x3" in op or "x4" in op)
                if op.startswith("buffer_"): self.sdata = R[0]
                else: self.sdata = R[1]
            elif self.lds:
                self.rd = flat(R) + [("m0", 0)]
            else:
                self.wr = R[0]; self.rd = flat(R[1:])
        elif op.startswith("ds_"):
            self.kind = "ds"
            if op.startswith("ds_read") or op.startswith("ds_bpermute") or op.startswith("ds_permute") or op.startswith("ds_swizzle"):
                self.wr = R[0]; self.rd = flat(R[1:])
            else:
                self.rd = flat(R)
            if "addtid" in op: self.rd = self.rd + [("m0", 0)]
        elif op.startswith("s_"):
            self.kind = "salu"
            if op.startswith("s_cmp") or op.startswith("s_cbranch") or op.startswith("s_branch") or op in ("s_waitcnt", "s_barrier", "s_nop", "s_endpgm", "s_setprio", "s_sleep", "s_set_gpr_idx_off"):
                self.rd = flat(R)
            elif op.startswith("s_set_gpr_idx"):
                self.rd = flat(R); self.wr = [("m0", 0)]
            else:
                self.wr = R[0] if R else []; self.rd = flat(R[1:])
                if "saveexec" in op: self.wr = self.wr + [("exec", 0)]
        else:
            raise ValueError("unknown instr: " + text)
    def states(self):
        if self.kind is None: return 0
        if self.op == "s_nop": return int(self.ops[0], 0) + 1
        return 1

def isv(r): return r[0] in ("v", "a")
def iss(r): return r[0] in ("s", "vcc")

def need(p, c):
    n = 0
    pw = set(p.wr); cr = set(c.rd); cw = set(c.wr)
    if p.kind == "valu":
        vw = {r for r in pw if isv(r)}
        sw = {r for r in pw if iss(r)}
        if c.kind == "mfma" and vw & cr: n = max(n, 3 if p.dot else 2)
        if c.kind == "valu":
            if p.trans and not c.trans and vw & cr: n = max(n, 1)
            if c.dpp and vw & cr: n = max(n, 2)
            if c.permlane and vw & cr: n = max(n, 2)
            if c.lane and vw & cr: n = max(n, 1)
            if sw & cr: n = max(n, 4 if c.lane else 2)
            if p.dot and (vw & (cr | cw)) and not (c.op == p.op and not (vw & (cr - cw))): n = max(n, 3)
            if ("exec", 0) in pw:
                if c.dpp: n = max(n, 5)
                if c.lane or c.permlane: n = max(n, 4)
                if ("exec", 0) in cr: n = max(n, 2)
        if p.dot and c.kind in ("vmem", "ds") and vw & cr: n = max(n, 3)
        if p.trans and c.kind in ("vmem", "ds") and vw & cr: n = max(n, 1)
        if c.kind == "vmem" and sw & cr: n = max(n, 5)
        if c.kind == "mfma" and ("exec", 0) in pw: n = max(n, 4)
        if c.kind == "salu" and sw & cr: n = max(n, 1)
    if p.kind == "mfma":
        t = {4: (0, 6, 8, 3), 8: (0, 10, 12, 7)}[p.passes]
        if c.kind == "mfma":
            cc = set(c.srcc)
            if pw & cc:
                if pw == cc and p.passes == c.passes: pass
                else: n = max(n, t[1])
            if pw & set(c.srcab): n = max(n, t[2])
            if (pw & cw) and not (pw & cc): n = max(n, t[2])
        elif c.kind in ("valu", "vmem", "ds"):
            if pw & (cr | cw): n = max(n, t[2])
        if c.kind == "valu" and set(p.srcc) & cw: n = max(n, t[3])
    if p.kind == "vmem" and getattr(p, "wide_store", False):
        if set(p.sdata) & cw and c.kind in ("valu", "mfma"): n = max(n, 2)
        elif set(p.sdata) & cw: n = max(n, 1)
    if p.kind == "salu" and ("m0", 0) in pw and ("m0", 0) in cr and c.kind in ("vmem", "ds"): n = max(n, 1)
    return n

MAXW = 14
def pad(lines, verbose=False):
    ins = [Ins(l) for l in lines]
    out = []
    def required(hist, c):
        dist = 0; req = 0
        for p in reversed(hist):
            if p.kind is None: continue
            r = need(p, c) - dist
            req = max(req, r)
            dist += p.states()
            if dist > MAXW: break
        return req
    for c in ins:
        if c.kind is not None:
            r = required(out, c)
            while r > 0:
                k = min(r, 16)
                out.append(Ins("    s_nop %d" % (k - 1))); r -= k
        out.append(c)
    changed = True
    while changed:
        changed = False
        labels = {i.text.split(";")[0].strip()[:-1]: k for k, i in enumerate(out) if i.label}
        for k, b in enumerate(out):
            if b.kind == "salu" and (b.op.startswith("s_cbranch") or b.op == "s_branch"):
                tgt = b.ops[0]
                if tgt not in labels: continue
                hist = out[max(0, k - 40):k + 1]
                j = labels[tgt]; cnt = 0; worst = 0
                h2 = list(hist)
                nh = len(hist)
                while j < len(out) and cnt <= MAXW:
                    c = out[j]
                    if c.kind is not None:
                        worst = max(worst, required(h2, c))
                        cnt += c.states()
                        if c.op in ("s_branch", "s_endpgm"): break
                    h2.append(c); j += 1
                if worst > 0:
                    out.insert(k, Ins("    s_nop %d" % (worst - 1)))
                    changed = True
                    break
    return [i.text for i in out]

class Asm:
    DIAG = False
    def __init__(self, kidx=0):
        self.lines = []
        self.kidx = kidx
    def start(self):
        if not Asm.DIAG: return
        self("s_memrealtime s[64:65]\ns_memtime s[66:67]")
        for i in range(1, 13): self(f"s_mov_b32 s{66+2*i}, 0")
    def stamp(self, i):
        if not Asm.DIAG: return
        assert 1 <= i <= 12
        self(f"s_memtime s[{66+2*i}:{67+2*i}]")
    def end(self, drain=True):
        if Asm.DIAG:
            self("s_mov_b64 exec, -1")
            self("s_memtime s[88:89]")
            self("s_waitcnt vmcnt(0)")
            self("s_memtime s[90:91]\ns_memrealtime s[92:93]\ns_getreg_b32 s94, hwreg(HW_REG_HW_ID)\ns_getreg_b32 s95, hwreg(HW_REG_XCC_ID)\ns_waitcnt lgkmcnt(0)")
            self("v_mov_b32 v0, s64\nv_mov_b32 v1, s92\nv_mov_b32 v2, s94\nv_mov_b32 v3, s95")
            for i in range(1, 13):
                self(f"s_sub_u32 s96, s{66+2*i}, s66\ns_cmp_eq_u32 s{66+2*i}, 0\ns_cselect_b32 s96, 0, s96\nv_mov_b32 v{3+i}, s96")
            self(f"s_lshl_b32 s96, s2, 2\ns_add_u32 s96, s96, s48\ns_lshl_b32 s96, s96, 6\ns_add_u32 s96, s96, {0xC00000 + self.kidx*0x100000}")
            self("v_mov_b32 v16, 0\ns_mov_b64 exec, 1\ns_mov_b32 s10, 0x1000000")
            for k in range(4): self(f"buffer_store_dwordx4 v[{4*k}:{4*k+3}], v16, s[8:11], s96 offen offset:{16*k}")
        self("s_endpgm")
    def __call__(self, s):
        for l in s.strip("\n").split("\n"):
            l = l.strip()
            if not l: continue
            if l.endswith(":") or l.startswith("."): self.lines.append(l)
            else: self.lines.append("    " + l)
    def text(self):
        return "\n".join(pad(self.lines)) + "\n"

def vr(a, n=1, k="v"):
    return f"{k}{a}" if n == 1 else f"{k}[{a}:{a+n-1}]"
```

```python
import sys, math
sys.path.insert(0, "work")
from asmlib import *

KN = "gated_mix__spectral_gfnet__ssm_conv_s4__prompt_kernel"
LOG2E = 1.4426950408889634
XB = 2048 * 448 * 2
WB_ = 2048 * 225 * 2
Z_OFF = 0x000000; V_OFF = 0x200000; XT_OFF = 0x400080; BT_OFF = 0x600000; EP_OFF = 0x7F0000
ROWS = 4224
WS_USED = 0x800000
LDS_BYTES = 52864
NA, NX, NB = 256, 56, 448
SPIN = 4000

class LG:
    def __init__(self, A, name, maxc):
        self.A = A; self.q = []; self.name = name; self.maxc = maxc
    def issue(self, tag): self.q.append(tag)
    def wait(self, tag):
        if tag not in self.q: return
        i = len(self.q) - 1 - self.q[::-1].index(tag)
        n = min(len(self.q) - 1 - i, self.maxc)
        self.A(f"s_waitcnt {self.name}({n})")
        self.q = self.q[len(self.q) - n:] if n > 0 else []
    def drain(self):
        self.A(f"s_waitcnt {self.name}(0)"); self.q = []

def cmul(A, dst, a, e, T):
    A(f"v_pk_mul_f32 {vr(T,2)}, {vr(a,2)}, {vr(e,2)} op_sel:[0,0] op_sel_hi:[0,1]")
    A(f"v_pk_fma_f32 {vr(dst,2)}, {vr(a,2)}, {vr(e,2)}, {vr(T,2)} op_sel:[1,1,0] op_sel_hi:[1,0,1] neg_lo:[1,0,0]")

def cheb(A, X, Y, a2):
    A(f"v_pk_fma_f32 {vr(X,2)}, {vr(a2,2)}, {vr(Y,2)}, {vr(X,2)} op_sel_hi:[0,1,1] neg_lo:[0,0,1] neg_hi:[0,0,1]")

TAGMASK_LO = 0x7fff7fff

def gen(A):
    A(f".globl {KN}\n.p2align 8\n.type {KN},@function\n{KN}:")
    A.start()
    A(f"""
    s_load_dwordx2 s[4:5], s[0:1], 0
    s_load_dwordx2 s[8:9], s[0:1], 120
    s_load_dwordx16 s[16:31], s[0:1], 0
    s_load_dwordx16 s[32:47], s[0:1], 64
    v_lshrrev_b32 v2, 6, v0
    v_and_b32 v1, 63, v0
    s_mov_b32 s6, {XB}
    v_readfirstlane_b32 s48, v2
    s_mov_b32 s7, 0x20000
    s_mov_b32 s10, {WS_USED}
    s_mov_b32 s11, 0x20000
    v_lshlrev_b32 v3, 4, v1          ; lane*16
    s_cmp_ge_u32 s2, {NA+NX}
    s_cbranch_scc1 L_B
    s_setprio 3
    s_cmp_ge_u32 s2, {NA}
    s_cbranch_scc1 L_XT
    s_cmp_ge_u32 s2, 32
    s_cbranch_scc1 L_A0
    s_getpc_b64 s[50:51]
    L_PC:
    v_lshlrev_b32 v4, 7, v0
    v_mov_b32 v5, s51
    v_cmp_gt_u32 vcc, L_CODE_END-L_PC, v4
    s_and_saveexec_b64 s[52:53], vcc
    s_cbranch_execz L_PF1
    v_add_co_u32 v4, vcc, s50, v4
    v_addc_co_u32 v5, vcc, 0, v5, vcc
    global_load_dword v167, v[4:5], off
    L_PF1:
    s_mov_b64 exec, s[52:53]
    L_A0:
    """)
    gen_A(A)
    gen_XT(A)
    gen_B(A)
    A("L_EXIT:\ns_endpgm\nL_CODE_END:")

def gen_A(A):
    XL = 912; SM = 32 * XL; GWL = SM + 4096; GPL = GWL + 1024; ZT = GPL + 1024; YX = ZT + 8192
    EX = ZT; BL = YX
    FR, ACC, F0, F1, AB, S0, W, ZO = 16, 72, 88, 96, 88, 112, 128, 144
    S1 = FR; ACC2 = 88; PB = 104
    A(f"""
    s_and_b32 s49, s2, 63
    s_lshr_b32 s50, s2, 6
    s_lshl_b32 s55, s48, 9
    s_add_u32 s55, s55, s49
    s_mul_i32 s55, s55, 896
    s_mul_i32 m0, s48, {8*XL}
    s_lshl_b32 s51, s50, 2
    s_add_u32 s51, s51, s48          ; tau
    s_lshr_b32 s56, s51, 1
    s_mul_i32 s56, s56, 30
    s_and_b32 s57, s51, 1
    s_add_u32 s56, s56, s57
    s_mul_i32 s57, s57, 0x80008000
    v_and_b32 v7, 15, v1             ; m / col
    v_lshl_add_u32 v4, v7, 1, s56
    v_cvt_f32_u32 v4, v4
    v_mul_f32 v4, {fhex(1/448)}, v4  ; kappa
    v_and_b32 v5, 32, v1
    v_cvt_f32_u32 v5, v5
    v_mul_f32 v5, {fhex(0.25)}, v5   ; 8h
    v_and_b32 v6, 16, v1
    v_cvt_f32_u32 v6, v6
    v_mul_f32 v6, {fhex(1/64)}, v6   ; phi
    v_fma_f32 v8, v4, v5, v6         ; base
    """)
    for j in range(8):
        A(f"v_fmamk_f32 v9, v4, {fhex(float(j))}, v8\nv_fmamk_f32 v10, v4, {fhex(float(j+16))}, v8")
        A(f"v_cos_f32 v{F0+j}, v9\nv_cos_f32 v{F1+j}, v10")
    A(f"""
    v_mul_f32 v9, {fhex(16.0)}, v4
    v_cos_f32 v12, v9
    s_mov_b32 exec_hi, 0x00ffffff
    s_waitcnt lgkmcnt(0)
    """)
    A.stamp(1)
    for i in range(8):
        A("buffer_load_dwordx4 v3, s[4:7], s55 offen lds")
        if i < 7: A(f"s_add_u32 m0, m0, {XL}\ns_add_u32 s55, s55, {64*896}")
    A(f"""
    s_mov_b32 s55, {EP_OFF}
    s_load_dword s54, s[8:9], s55
    s_cmp_lg_u32 s48, 3
    s_cbranch_scc1 L_A1
    s_mov_b32 m0, {GWL}
    global_load_lds_dwordx4 v3, s[40:41]
    L_A1:
    s_mov_b32 exec_hi, -1
    v_add_f32 v12, v12, v12
    """)
    for t in range(14):
        X, Y = (F0, F1) if t % 2 == 0 else (F1, F0)
        for k in range(4): A(f"v_cvt_pk_bf16_f32 v{FR+4*t+k}, v{X+2*k}, v{X+2*k+1}")
        if t + 2 < 14:
            for k in range(4): cheb(A, X + 2*k, Y + 2*k, 12)
    A(f"""
    s_lshl_b32 s55, s48, 3
    v_lshrrev_b32 v9, 1, v7
    v_add_u32 v9, s55, v9
    v_cvt_f32_u32 v9, v9             ; c
    v_cvt_f32_u32 v10, s49           ; b
    v_mul_f32 v10, {fhex(1/2048)}, v10
    v_fmamk_f32 v10, v5, {fhex(1/64)}, v10
    v_and_b32 v11, 1, v1
    v_cvt_f32_u32 v11, v11
    v_mul_f32 v13, {fhex(0.25)}, v11
    v_sub_f32 v11, v13, v6
    v_fma_f32 v10, v9, v10, v11      ; base
    v_mul_f32 v9, {fhex(1/32)}, v9   ; step
    """)
    for j, aj in enumerate((0, 1, 2, 3, 8, 9, 10, 11)):
        A(f"v_fmamk_f32 v11, v9, {fhex(float(aj))}, v10\nv_cos_f32 v{F0+j}, v11")
    for k in range(4): A(f"v_cvt_pk_bf16_f32 v{F1+k}, v{F0+2*k}, v{F0+2*k+1}")
    A(f"""
    v_lshlrev_b32 v9, 4, v0
    ds_write_b128 v9, {vr(F1,4)} offset:{SM}
    s_and_b32 s52, s2, 31            ; c
    s_lshr_b32 s53, s2, 5            ; tau2
    s_mov_b32 s12, s18
    s_mov_b32 s13, s19
    s_mov_b32 s14, {WB_}
    s_mov_b32 s15, 0x20000
    s_mov_b32 s22, {WB_}
    s_mov_b32 s23, 0x20000
    v_lshrrev_b32 v14, 5, v1         ; h
    v_bfe_u32 v10, v1, 4, 1
    v_lshl_add_u32 v15, v7, 1, v10
    v_mul_u32_u24 v10, 14400, v14
    v_lshl_add_u32 v10, v15, 1, v10
    s_mul_i32 s55, s52, 450
    s_mul_i32 s56, s53, 60
    s_add_u32 s55, s55, s56
    s_mul_i32 s56, s48, {16*14400}
    s_add_u32 s55, s55, s56
    """)
    for pi in range(8):
        A(f"buffer_load_short_d16_hi v{W+2*pi}, v10, s[12:15], s55 offen")
        A(f"buffer_load_short_d16_hi v{W+2*pi+1}, v10, s[20:23], s55 offen")
        if pi < 7: A("s_add_u32 s55, s55, 28800")
    A(f"""
    v_and_b32 v9, 31, v1
    v_mul_u32_u24 v9, {XL}, v9
    v_lshl_add_u32 v9, v14, 4, v9
    v_lshlrev_b32 v11, 30, v1
    v_and_b32 v11, 0x80000000, v11
    v_lshrrev_b32 v12, 16, v11
    v_or_b32 v11, v11, v12
    v_lshrrev_b32 v12, 4, v1
    v_lshlrev_b32 v12, 17, v12
    v_lshl_add_u32 v12, v7, 2, v12
    s_lshr_b32 s55, s51, 1
    s_lshl_b32 s55, s55, 13
    s_and_b32 s56, s51, 1
    s_lshl_b32 s56, s56, 6
    s_add_u32 s55, s55, s56
    s_lshl_b32 s56, s49, 7
    s_add_u32 s24, s55, s56
    """)
    for i in range(1, 8): A(f"s_add_u32 s{24+i}, s24, {(8*(i>>1) + (i&1))*65536}")
    A(f"""
    s_waitcnt lgkmcnt(0)
    s_or_b32 s54, s54, 0x40004000
    s_add_u32 s54, s54, 1
    s_and_b32 s54, s54, 0xbfffbfff   ; nonce
    """)
    for k in range(8): A(f"v_mov_b32 v{ZO+k}, s54")
    A.stamp(2)
    A("s_waitcnt vmcnt(16)\ns_barrier")
    A.stamp(3)
    lg = LG(A, "lgkmcnt", 15)
    NBUF = 6
    def rd(t):
        A(f"ds_read_b128 {vr(AB+4*(t%NBUF),4)}, v9 offset:{32*t}"); lg.issue(t)
    for t in range(NBUF): rd(t)
    for t in range(28):
        lg.wait(t)
        c = "0" if t == 0 else vr(ACC, 16)
        A(f"v_mfma_f32_32x32x16_bf16 {vr(ACC,16)}, {vr(AB+4*(t%NBUF),4)}, {vr(FR+4*(t%14),4)}, {c}")
        if 12 <= t < 16:
            mu = t - 12
            A(f"ds_read_b128 {vr(S0+4*mu,4)}, v3 offset:{SM+1024*mu}"); lg.issue(f"s{mu}")
        if t + NBUF < 28: rd(t + NBUF)
        if t < 14:
            for k in range(4): A(f"v_xor_b32 v{FR+4*t+k}, s57, v{FR+4*t+k}")
        if 22 <= t < 26:
            mu = t - 22
            for k in range(4): A(f"v_xor_b32 v{S1+4*mu+k}, v11, v{S0+4*mu+k}")
    for k in range(4): A(f"v_cvt_pk_bf16_f32 v{PB+k}, v{ACC+2*k}, v{ACC+2*k+1}")
    for k in range(4, 6): A(f"v_cvt_pk_bf16_f32 v{PB+k}, v{ACC+2*k}, v{ACC+2*k+1}")
    for mu in range(4):
        A(f"v_mfma_f32_16x16x32_bf16 {vr(ACC2+4*mu,4)}, {vr(S0+4*mu,4)}, {vr(PB,4)}, 0")
        if mu < 2: A(f"v_cvt_pk_bf16_f32 v{PB+6+mu}, v{ACC+12+2*mu}, v{ACC+13+2*mu}")
    for mu in range(4):
        A(f"v_mfma_f32_16x16x32_bf16 {vr(ACC2+4*mu,4)}, {vr(S1+4*mu,4)}, {vr(PB+4,4)}, {vr(ACC2+4*mu,4)}")
    A(f"s_mov_b32 exec_lo, {TAGMASK_LO}\ns_mov_b32 exec_hi, {TAGMASK_LO}")
    for i in range(8): A(f"v_cvt_pk_bf16_f32 v{ZO+i}, v{ACC2+2*i}, v{ACC2+2*i+1}")
    A("s_mov_b64 exec, -1")
    for i in range(8): A(f"buffer_store_dword v{ZO+i}, v12, s[8:11], s{24+i} offen sc1")
    A.stamp(4)
    GX, GG = 48, 76
    A(f"""
    s_setprio 1
    v_and_b32 v9, 31, v1
    v_mul_u32_u24 v9, {XL}, v9
    v_lshrrev_b32 v10, 5, v0
    v_mul_u32_u24 v10, 112, v10
    v_add_u32 v9, v9, v10
    """)
    for i in range(7):
        A(f"ds_read_b128 {vr(GX+4*i,4)}, v9 offset:{16*i}")
        A(f"ds_read_b128 {vr(GG+4*i,4)}, v10 offset:{GWL+16*i}")
    MF, BF, PA, VO = 16, 48, 80, 144
    A(f"""
    v_bfe_u32 v4, v1, 3, 2
    v_lshlrev_b32 v4, 2, v4
    v_and_b32 v5, 2, v1
    v_bfe_u32 v6, v1, 2, 1
    v_add3_u32 v4, v4, v5, v6
    s_lshl_b32 s55, s48, 4
    v_add_u32 v4, s55, v4
    v_cvt_f32_u32 v4, v4
    v_mul_f32 v4, {fhex(1/32)}, v4   ; step
    v_cvt_f32_u32 v5, v14
    v_mul_f32 v5, 0.5, v5
    v_fma_f32 v5, v5, v4, v13        ; angle0
    v_add_f32 v8, v5, v4
    v_cos_f32 v104, v5
    v_sin_f32 v105, v5
    v_cos_f32 v106, v8
    v_sin_f32 v107, v8
    v_cos_f32 v108, v4
    v_lshlrev_b32 v6, 31, v6
    v_lshrrev_b32 v5, 16, v6
    v_or_b32 v6, v6, v5
    v_add_f32 v108, v108, v108
    """)
    for i in range(16):
        X, Y = (104, 106) if i % 2 == 0 else (106, 104)
        A(f"v_cvt_pk_bf16_f32 v{MF+i}, v{X}, v{X+1}")
        if i + 2 < 16: cheb(A, X, Y, 108)
        A(f"v_xor_b32 v{MF+16+i}, v6, v{MF+i}")
    A("v_mov_b32 v104, 0\nv_mov_b32 v105, 0\ns_waitcnt lgkmcnt(0)")
    for i in range(28): A(f"v_dot2c_f32_bf16 v{104+(i&1)}, v{GX+i}, v{GG+i}")
    A(f"""
    v_lshlrev_b32 v9, 2, v0
    v_add_f32 v104, v104, v105
    ds_write_b32 v9, v104 offset:{GPL}
    s_mul_i32 s55, s53, 30
    v_add_u32 v4, s55, v15           ; k2
    v_mov_b32 v10, 1.0
    v_cmp_eq_u32 vcc, 0, v4
    v_cndmask_b32 v10, v10, 0.5, vcc
    v_cmp_eq_u32 vcc, 224, v4
    v_cndmask_b32 v10, v10, 0.5, vcc
    v_cmp_lt_u32 vcc, 224, v4
    v_cndmask_b32 v10, v10, 0, vcc
    s_lshl_b32 s55, s52, 16
    s_lshl_b32 s56, s53, 13
    s_add_u32 s55, s55, s56
    s_lshl_b32 s56, s48, 11
    s_add_u32 s55, s55, s56          ; Z source
    s_add_u32 s56, s56, {ZT}
    v_lshlrev_b32 v9, 6, v1
    v_and_b32 v9, 0x7ff, v9
    v_add_u32 v9, s56, v9
    v_lshlrev_b32 v2, 2, v1          ; lane*4
    v_and_b32 v12, 31, v1
    v_lshlrev_b32 v12, 2, v12
    v_lshl_add_u32 v12, v14, 15, v12 ; V voffset
    s_lshr_b32 s58, s52, 1
    s_and_b32 s59, s52, 1
    s_lshl_b32 s59, s59, 4
    s_add_u32 s58, s58, s59
    s_lshl_b32 s58, s58, 7
    s_lshl_b32 s59, s53, 12
    s_add_u32 s58, s58, s59
    s_lshl_b32 s59, s48, 19
    s_add_u32 s58, s58, s59
    s_add_u32 s24, s58, {V_OFF}
    """)
    for i in range(1, 8): A(f"s_add_u32 s{24+i}, s24, {i*65536}")
    A(f"""
    s_lshl_b32 s58, s48, 11
    v_add_u32 v11, s58, v3
    s_waitcnt vmcnt(8)
    """)
    for pi in range(8): A(f"v_pk_mul_f32 {vr(W+2*pi,2)}, {vr(W+2*pi,2)}, v[10:11] op_sel_hi:[1,0]")
    A(f"""
    s_setprio 3
    s_mov_b32 m0, s56
    s_mov_b32 s59, 0
    """)
    A.stamp(5)
    A(f"""
    L_ZP:
    buffer_load_dwordx4 v3, s[8:11], s55 offen sc1 lds
    buffer_load_dwordx4 v3, s[8:11], s55 offen offset:1024 sc1 lds
    s_waitcnt vmcnt(0)
    ds_read_b32 v4, v9 offset:60
    s_add_u32 s59, s59, 1
    s_waitcnt lgkmcnt(0)
    v_cmp_ne_u32 vcc, s54, v4
    s_cmp_gt_u32 s59, {SPIN}
    s_cbranch_scc1 L_ZD
    s_cbranch_vccnz L_ZP
    L_ZD:
    s_barrier
    """)
    A.stamp(6)
    for s_ in range(8):
        for hf in range(2):
            A(f"ds_read2st64_b32 {vr(BF+4*s_+2*hf,2)}, v2 offset0:{ZT//256+4*s_+2*hf} offset1:{ZT//256+4*s_+2*hf+1}")
    for s_ in range(8):
        A(f"s_waitcnt lgkmcnt({14-2*s_})")
        c = "0" if s_ == 0 else vr(PA, 16)
        A(f"v_mfma_f32_32x32x16_bf16 {vr(PA,16)}, {vr(MF+4*s_,4)}, {vr(BF+4*s_,4)}, {c}")
    for pi in range(8):
        T = 104 + 2*(pi & 1)
        cmul(A, T, PA + 2*pi, W + 2*pi, T)
        A(f"v_cvt_pk_bf16_f32 v{96+pi}, v{T}, -v{T+1}")
        if pi == 3: A(f"ds_write_b128 v11, v[96:99] offset:{YX}")
    A(f"ds_write_b128 v11, v[100:103] offset:{YX+1024}\ns_waitcnt lgkmcnt(0)\ns_barrier")
    for s_ in range(8): A(f"ds_read_b128 {vr(BF+4*s_,4)}, v3 offset:{YX+1024*s_}")
    for s_ in range(8):
        A(f"s_waitcnt lgkmcnt({7-s_})")
        c = "0" if s_ == 0 else vr(PA, 16)
        A(f"v_mfma_f32_32x32x16_bf16 {vr(PA,16)}, {vr(MF+4*s_,4)}, {vr(BF+4*s_,4)}, {c}")
    A(f"s_mov_b32 exec_lo, {TAGMASK_LO}\ns_mov_b32 exec_hi, {TAGMASK_LO}")
    for i in range(8): A(f"v_cvt_pk_bf16_f32 v{VO+i}, v{PA+2*i}, v{PA+2*i+1}")
    A("s_mov_b64 exec, -1")
    for i in range(8): A(f"buffer_store_dword v{VO+i}, v12, s[8:11], s{24+i} offen sc1")
    A.stamp(7)
    FI, G, VF0, VF1, A0, A1X = 16, 80, 96, 152, 112, 144
    ST = 112
    A(f"""
    s_setprio 1
    s_mov_b32 s12, s44
    s_mov_b32 s13, s45
    s_mov_b32 s14, 256
    v_and_b32 v4, 31, v1             ; m / n
    buffer_load_dword v10, v2, s[12:15], 0 offen sc1
    s_and_b32 s57, s48, 1            ; pi
    s_lshr_b32 s58, s48, 1
    s_lshl_b32 s59, s50, 1
    s_add_u32 s58, s58, s59          ; delta
    s_lshl_b32 s59, s57, 4
    v_xor_b32 v5, s59, v4            ; m^16pi
    v_bfe_u32 v6, v5, 2, 1
    v_bfe_u32 v8, v5, 3, 1
    v_and_b32 v5, 19, v5
    v_lshl_add_u32 v5, v6, 3, v5
    v_lshl_add_u32 v5, v8, 2, v5     ; d_local
    s_lshl_b32 s59, s58, 5
    v_add_u32 v5, s59, v5
    v_cvt_f32_u32 v5, v5
    v_mul_f32 v5, {fhex(1/448)}, v5  ; kappa
    v_lshl_add_u32 v6, v14, 3, s57
    v_cvt_f32_u32 v6, v6
    v_mul_f32 v6, v6, v5
    """)
    C0, S0_, C1, S1_ = ST, ST + 8, ST + 16, ST + 24
    for j, cj in enumerate((0, 1, 2, 3, 8, 9, 10, 11)):
        A(f"""
        v_fmamk_f32 v8, v5, {fhex(float(2*cj))}, v6
        v_fmamk_f32 v9, v5, {fhex(float(2*cj+30))}, v6
        v_cos_f32 v{C0+j}, v8
        v_sin_f32 v{S0_+j}, v8
        v_cos_f32 v{C1+j}, v9
        v_sin_f32 v{S1_+j}, v9
        """)
    A(f"""
    v_mul_f32 v8, {fhex(30.0)}, v5
    v_cos_f32 v8, v8
    s_mov_b32 exec_lo, 0
    v_mov_b32 v{C0+7}, 0
    v_mov_b32 v{S0_+7}, 0
    v_mov_b32 v{C1+7}, 0
    v_mov_b32 v{S1_+7}, 0
    s_mov_b32 exec_lo, -1
    v_add_f32 v8, v8, v8
    """)
    for t in range(8):
        X, Y = (ST, ST + 16) if t % 2 == 0 else (ST + 16, ST)
        for k in range(8): A(f"v_cvt_pk_bf16_f32 v{FI+8*t+k}, v{X+2*k}, v{X+2*k+1}")
        if t + 2 < 8:
            for k in range(8): cheb(A, X + 2*k, Y + 2*k, 8)
    A(f"v_lshlrev_b32 v9, 2, v4")
    for k in range(4): A(f"ds_read2_b32 {vr(VF0+2*k,2)}, v9 offset0:{64*k} offset1:{64*k+32}".replace("v9 ", "v9 "))
    A.lines[-5] = f"    v_lshl_add_u32 v9, v4, 2, s59"
    A.lines.insert(-5, f"    s_mov_b32 s59, {GPL}")
    A(f"""
    v_lshl_add_u32 v5, v7, 6, s49
    v_cvt_f32_u32 v5, v5
    v_mul_f32 v5, {fhex(1/2048)}, v5 ; s'/2048
    v_and_b32 v6, 16, v1
    v_cvt_f32_u32 v6, v6
    v_mul_f32 v6, {fhex(1/64)}, v6
    v_lshlrev_b32 v9, 1, v14
    v_cvt_f32_u32 v9, v9
    v_fma_f32 v6, v9, v5, v6         ; angle(c=2h)
    v_mul_f32 v8, 4.0, v5
    v_add_f32 v9, v6, v8
    v_cos_f32 v{ST}, v6
    v_sin_f32 v{ST+1}, v6
    v_cos_f32 v{ST+2}, v9
    v_sin_f32 v{ST+3}, v9
    v_add_f32 v6, v6, v5
    v_add_f32 v9, v9, v5
    v_cos_f32 v{ST+4}, v6
    v_sin_f32 v{ST+5}, v6
    v_cos_f32 v{ST+6}, v9
    v_sin_f32 v{ST+7}, v9
    v_cos_f32 v8, v8
    s_nop 0
    v_add_f32 v8, v8, v8
    """)
    for i in range(8):
        for o in range(2):
            X, Y = (ST + 4*o, ST + 4*o + 2) if i % 2 == 0 else (ST + 4*o + 2, ST + 4*o)
            A(f"v_cvt_pk_bf16_f32 v{G+8*o+i}, v{X}, v{X+1}")
            if i + 2 < 8: cheb(A, X, Y, 8)
    A("s_waitcnt lgkmcnt(0)")
    A(f"v_pk_add_f32 {vr(VF0,2)}, {vr(VF0,2)}, {vr(VF0+2,2)}\nv_pk_add_f32 {vr(VF0+4,2)}, {vr(VF0+4,2)}, {vr(VF0+6,2)}\nv_pk_add_f32 {vr(VF0,2)}, {vr(VF0,2)}, {vr(VF0+4,2)}")
    A(f"""
    v_add_f32 v8, v{VF0}, v{VF0+1}
    v_cvt_pk_bf16_f32 v8, v8, v8
    v_lshlrev_b32 v8, 16, v8
    v_mul_f32 v8, {fhex(-LOG2E)}, v8
    v_exp_f32 v8, v8
    v_add_f32 v8, 1.0, v8
    v_rcp_f32 v8, v8
    v_cvt_pk_bf16_f32 v8, v8, v8
    v_lshlrev_b32 v8, 16, v8         ; g
    v_sub_f32 v6, 1.0, v8
    v_cvt_pk_bf16_f32 v6, v6, v6
    v_lshlrev_b32 v6, 16, v6         ; 1-g      (v6)
    v_mul_f32 v8, {fhex(2/917504)}, v8 ; g*scale (v8)
    s_lshl_b32 s59, s57, 31
    v_xor_b32 v9, s59, v8            ; +-g*scale (v9)
    ; addresses
    s_lshl_b32 s55, s49, 15
    s_lshl_b32 s56, s48, 13
    s_add_u32 s55, s55, s56
    s_add_u32 s55, s55, {V_OFF}
    s_add_u32 s24, s55, 4096
    s_add_u32 s25, s56, 4096
    v_add_u32 v11, s56, v2
    v_lshl_add_u32 v12, v1, 6, s56
    v_add_u32 v12, 60, v12
    v_bfe_u32 v13, v1, 4, 1
    v_lshlrev_b32 v13, 10, v13
    v_lshl_add_u32 v13, v14, 9, v13
    v_lshl_add_u32 v13, v7, 4, v13
    v_add_u32 v13, s56, v13
    s_lshl_b32 s59, s57, 11
    v_add_u32 v15, s59, v3
    s_mov_b32 s59, 0
    s_mov_b32 exec_hi, 0x00ffffff
    L_FP:
    s_waitcnt vmcnt(0)
    v_cmp_ne_u32 vcc, 1, v10
    s_add_u32 s59, s59, 1
    s_cmp_gt_u32 s59, {SPIN}
    s_cbranch_scc1 L_FD
    s_cbranch_vccz L_FD
    buffer_load_dword v10, v2, s[12:15], 0 offen sc1
    s_branch L_FP
    L_FD:
    s_mov_b32 exec_hi, -1
    s_setprio 3
    s_mov_b32 s59, 0
    """)
    A.stamp(8)
    E0, O0, E1, O1 = 112, 128, 96, 144
    VF1 = 152
    A("L_VP:\ns_mov_b32 m0, s56")
    for i in range(4): A(f"buffer_load_dwordx4 v3, s[8:11], s55 offen offset:{1024*i} sc1 lds")
    A("s_mov_b32 m0, s25")
    for i in range(4): A(f"buffer_load_dwordx4 v3, s[8:11], s24 offen offset:{1024*i} sc1 lds")
    A("s_waitcnt vmcnt(4)")
    for k in range(8): A(f"ds_read2st64_b32 {vr(VF0+2*k,2)}, v11 offset0:{2*k} offset1:{2*k+1}")
    A("s_waitcnt vmcnt(0)")
    A("ds_read2st64_b32 v[4:5], v12 offset0:0 offset1:16".replace("v12", "v12"))
    for k in range(6): A(f"ds_read2st64_b32 {vr(VF1+2*k,2)}, v11 offset0:{16+2*k} offset1:{16+2*k+1}")
    for u in range(4):
        A(f"s_waitcnt lgkmcnt({13-2*u})")
        a = E0 if u < 2 else O0
        c = "0" if u % 2 == 0 else vr(a, 16)
        A(f"v_mfma_f32_32x32x16_bf16 {vr(a,16)}, {vr(VF0+4*u,4)}, {vr(G+4*u,4)}, {c}")
    for k in range(6, 8): A(f"ds_read2st64_b32 {vr(VF1+2*k,2)}, v11 offset0:{16+2*k} offset1:{16+2*k+1}")
    A(f"""
    s_add_u32 s59, s59, 1
    s_waitcnt lgkmcnt(8)
    v_cmp_ne_u32 vcc, s54, v4
    v_cmp_ne_u32 s[60:61], s54, v5
    s_cmp_gt_u32 s59, {SPIN}
    s_cbranch_scc1 L_VD
    s_or_b64 vcc, vcc, s[60:61]
    s_cbranch_vccz L_VD
    s_waitcnt lgkmcnt(0)
    s_branch L_VP
    L_VD:
    """)
    A.stamp(9)
    def bfly(E, O, ks):
        for k in ks:
            A(f"v_pk_add_f32 {vr(E+2*k,2)}, {vr(E+2*k,2)}, {vr(O+2*k,2)}")
            A(f"v_pk_fma_f32 {vr(O+2*k,2)}, {vr(O+2*k,2)}, -2.0, {vr(E+2*k,2)} op_sel_hi:[1,0,1]")
    def cvtw(R, tt, u, minus):
        a = R + 8*u
        for k in range(4): A(f"v_cvt_pk_bf16_f32 v{a+k}, v{a+2*k}, v{a+2*k+1}")
        A(f"ds_write_b128 v13, {vr(a,4)} offset:{tt*4096 + u*2048 + minus*256}")
    for u in range(4):
        A(f"s_waitcnt lgkmcnt({max(0, 6-2*u)})" if u < 3 else "s_waitcnt lgkmcnt(0)")
        a = E1 if u < 2 else O1
        c = "0" if u % 2 == 0 else vr(a, 16)
        A(f"v_mfma_f32_32x32x16_bf16 {vr(a,16)}, {vr(VF1+4*u,4)}, {vr(G+4*u,4)}, {c}")
        bfly(E0, O0, (2*u, 2*u + 1))
    for u in range(2):
        cvtw(E0, 0, u, 0); cvtw(O0, 0, u, 1)
    bfly(E1, O1, range(8))
    for u in range(2):
        cvtw(E1, 1, u, 0); cvtw(O1, 1, u, 1)
    A(f"""
    s_mul_i32 s55, s49, 28
    s_lshl_b32 s56, s58, 1
    s_add_u32 s55, s55, s56
    s_add_u32 s55, s55, s57
    s_lshl_b32 s55, s55, 10
    s_add_u32 s55, s55, {BT_OFF}
    s_add_u32 s24, s55, {224*64-1024}
    s_lshl_b32 s56, s48, 11
    s_add_u32 m0, s56, {BL}
    s_waitcnt lgkmcnt(0)
    s_barrier
    s_cmp_ge_u32 s58, 7
    s_cbranch_scc1 L_AIDLE
    """)
    A.stamp(10)
    MA, TB = 80, 96
    lg = LG(A, "lgkmcnt", 15)
    NBUF = 8
    def rdt(n):
        A(f"ds_read_b128 {vr(TB+4*(n%NBUF),4)}, v15 offset:{4096*(n>>1) + 1024*(n&1)}"); lg.issue(n)
    for n in range(NBUF): rdt(n)
    A("buffer_load_dwordx4 v3, s[8:11], s55 offen sc1 lds\nbuffer_load_dwordx4 v3, s[8:11], s24 offen offset:1024 sc1 lds")
    for n in range(16):
        lg.wait(n)
        c = "0" if n == 0 else vr(MA, 16)
        A(f"v_mfma_f32_32x32x16_bf16 {vr(MA,16)}, {vr(FI+4*n,4)}, {vr(TB+4*(n%NBUF),4)}, {c}")
        if n + NBUF < 16: rdt(n + NBUF)
        if n == 8:
            A(f"""
            v_and_b32 v4, 31, v1
            v_and_b32 v5, 3, v4
            v_lshrrev_b32 v10, 2, v4
            v_lshl_add_u32 v5, v5, 3, v10
            """)
        if n == 9:
            A(f"""
            v_lshlrev_b32 v5, 1, v5
            v_lshl_add_u32 v5, v14, 9, v5
            v_add_u32 v5, s56, v5
            v_add_u32 v11, s56, v3
            """)
        if n == 10:
            A(f"""
            v_xor_b32 v12, 0x800, v11
            v_lshl_add_u32 v4, v4, 6, s49
            v_mul_u32_u24 v4, 896, v4
            v_lshl_add_u32 v4, v14, 4, v4
            """)
        if n == 11:
            A(f"""
            s_mov_b32 s12, s42
            s_mov_b32 s13, s43
            s_mov_b32 s14, {XB}
            s_lshl_b32 s25, s58, 6
            s_lshl_b32 s26, s57, 5
            s_add_u32 s25, s25, s26
            s_mov_b32 s59, 0
            """)
    BV, RX = 128, 112
    A(f"ds_write_b128 v11, {vr(MA+8,4)} offset:{EX}\nds_write_b128 v11, {vr(MA+12,4)} offset:{EX+1024}")
    A("s_waitcnt vmcnt(0)")
    for r in range(16): A(f"ds_read_u16_d16_hi v{BV+r}, v5 offset:{BL + (r>>3)*1024 + (r&7)*64}")
    A(f"""
    s_waitcnt lgkmcnt(15)
    s_barrier
    ds_read_b128 {vr(RX,4)}, v12 offset:{EX}
    ds_read_b128 {vr(RX+4,4)}, v12 offset:{EX+1024}
    s_waitcnt lgkmcnt(2)
    L_BP:
    v_max3_u32 v10, v{BV}, v{BV+1}, v{BV+2}
    """)
    for r in range(3, 15, 2): A(f"v_max3_u32 v10, v10, v{BV+r}, v{BV+r+1}")
    A(f"""
    v_max_u32 v10, v10, v{BV+15}
    v_cmp_eq_u32 vcc, 0xffff0000, v10
    s_add_u32 s59, s59, 1
    s_cmp_gt_u32 s59, {SPIN}
    s_cbranch_scc1 L_BD
    s_cbranch_vccz L_BD
    buffer_load_dwordx4 v3, s[8:11], s55 offen sc1 lds
    buffer_load_dwordx4 v3, s[8:11], s24 offen offset:1024 sc1 lds
    s_waitcnt vmcnt(0)
    """)
    for r in range(16): A(f"ds_read_u16_d16_hi v{BV+r}, v5 offset:{BL + (r>>3)*1024 + (r&7)*64}")
    A("s_waitcnt lgkmcnt(0)\ns_branch L_BP\nL_BD:")
    for k in range(8): A(f"v_pk_mul_f32 {vr(BV+2*k,2)}, {vr(BV+2*k,2)}, v[6:7] op_sel_hi:[1,0]")
    A("s_waitcnt lgkmcnt(0)")
    for k in range(4):
        A(f"v_pk_add_f32 {vr(TB+2*k,2)}, {vr(MA+2*k,2)}, {vr(RX+2*k,2)}")
        A(f"v_pk_fma_f32 {vr(BV+2*k,2)}, {vr(TB+2*k,2)}, v[8:9], {vr(BV+2*k,2)} op_sel_hi:[1,0,1]")
        A(f"v_cvt_pk_bf16_f32 v{144+k}, v{BV+2*k}, v{BV+2*k+1}")
    A("buffer_store_dwordx4 v[144:147], v4, s[12:15], s25 offen")
    for k in range(4):
        A(f"v_pk_add_f32 {vr(TB+2*k,2)}, {vr(MA+2*k,2)}, {vr(RX+2*k,2)} neg_lo:[0,1] neg_hi:[0,1]")
        A(f"v_pk_fma_f32 {vr(BV+8+2*k,2)}, {vr(TB+2*k,2)}, v[8:9], {vr(BV+8+2*k,2)} op_sel:[0,1,0] op_sel_hi:[1,1,1]")
        A(f"v_cvt_pk_bf16_f32 v{148+k}, v{BV+8+2*k}, v{BV+8+2*k+1}")
    A("buffer_store_dwordx4 v[148:151], v4, s[12:15], s25 offen offset:448")
    A.end()
    A(f"""
    L_AIDLE:
    s_barrier
    s_cmp_lg_u32 s2, 255
    s_cbranch_scc1 L_AEND
    v_mov_b32 v4, s54
    v_mov_b32 v5, {EP_OFF}
    s_mov_b64 exec, 1
    buffer_store_dword v4, v5, s[8:11], 0 offen
    L_AEND:
    """)
    A.end()

def gen_XT(A):
    IN, OUT = 8, 40
    PADS = 1056
    A(f"""
    L_XT:
    s_sub_u32 s49, s2, {NA}
    s_lshr_b32 s50, s49, 3           ; db
    s_and_b32 s51, s49, 7
    s_lshl_b32 s51, s51, 2
    s_add_u32 s51, s51, s48          ; lb
    v_and_b32 v2, 7, v1
    v_lshrrev_b32 v5, 3, v1
    v_mul_u32_u24 v4, 896, v5
    v_lshl_add_u32 v4, v2, 4, v4
    s_mul_i32 s52, s51, {64*896}
    s_lshl_b32 s53, s50, 7
    s_add_u32 s52, s52, s53
    s_mul_i32 s53, s48, {8*PADS}
    s_mov_b32 m0, s53
    v_mov_b32 v{OUT}, -1
    v_mov_b32 v{OUT+1}, -1
    v_mov_b32 v{OUT+2}, -1
    v_mov_b32 v{OUT+3}, -1
    s_mul_i32 s54, s51, {2*448*64}
    s_lshl_b32 s55, s50, 12
    s_add_u32 s54, s54, s55
    s_add_u32 s54, s54, {BT_OFF}
    s_add_u32 s55, s54, {448*64}
    s_waitcnt lgkmcnt(0)
    """)
    A.stamp(1)
    for i in range(8):
        A("buffer_load_dwordx4 v4, s[4:7], s52 offen lds")
        if i < 7: A(f"s_add_u32 m0, m0, {PADS}\ns_add_u32 s52, s52, {8*896}")
    for i in range(8):
        A(f"buffer_store_dwordx4 {vr(OUT,4)}, v3, s[8:11], s{54 + i//4} offen offset:{1024*(i%4)} sc1")
    A(f"""
    s_mov_b32 s56, 0x05040100
    s_mov_b32 s57, 0x07060302
    v_mul_u32_u24 v6, {8*ROWS}, v5
    v_lshl_add_u32 v6, v2, 4, v6
    v_mul_u32_u24 v7, {PADS}, v2
    v_lshl_add_u32 v7, v5, 4, v7
    v_add_u32 v7, s53, v7
    s_mul_i32 s58, s50, {64*ROWS}
    s_add_u32 s58, s58, {XT_OFF}
    s_cmp_lg_u32 s51, 0
    s_cbranch_scc1 L_XT1
    v_mul_u32_u24 v4, {ROWS}, v1
    v_mov_b32 v{OUT+4}, 0
    v_mov_b32 v{OUT+5}, 0
    v_mov_b32 v{OUT+6}, 0
    v_mov_b32 v{OUT+7}, 0
    s_sub_u32 s59, s58, 16
    buffer_store_dwordx4 {vr(OUT+4,4)}, v4, s[8:11], s59 offen sc1
    s_waitcnt vmcnt(9)
    s_branch L_XT2
    L_XT1:
    s_waitcnt vmcnt(8)
    L_XT2:
    s_lshl_b32 s59, s51, 7
    s_add_u32 s58, s58, s59
    """)
    A.stamp(2)
    for i in range(8): A(f"ds_read_b128 {vr(IN+4*i,4)}, v7 offset:{128*i}")
    A("s_waitcnt lgkmcnt(0)")
    O2 = 48
    for k in range(4):
        for hi in range(2):
            ch = 2 * k + hi
            for m in range(4):
                A(f"v_perm_b32 v{O2+4*ch+m}, v{IN+4*(2*m+1)+k}, v{IN+4*(2*m)+k}, s{56+hi}")
            A(f"buffer_store_dwordx4 {vr(O2+4*ch,4)}, v6, s[8:11], s58 offen sc1")
            if ch < 7: A(f"s_add_u32 s58, s58, {ROWS}")
    A.stamp(3)
    A(f"""
    s_mov_b32 s12, s44
    s_mov_b32 s13, s45
    s_mov_b32 s14, 256
    s_mov_b32 s15, 0x20000
    s_lshl_b32 s59, s49, 2
    v_mov_b32 v4, 1
    v_mov_b32 v5, 0
    s_waitcnt vmcnt(0)
    s_barrier
    s_cmp_lg_u32 s48, 0
    s_cbranch_scc1 L_XTE
    s_mov_b64 exec, 1
    buffer_store_dword v4, v5, s[12:15], s59 offen sc1
    L_XTE:
    """)
    A.end()

def gen_B(A):
    E1, E8, E256, Q, T, CV, AF, BF, KA, GA = 10, 12, 14, 16, 32, 34, 40, 72, 104, 120
    RS = 272; WR = 32 * RS; TAB = 3072 + 16
    UB = 4 * WR; US = 4512; RB = 3 * WR; RSZ = 4208
    A(f"""
    L_B:
    s_cmp_ge_u32 s2, {NA+NX+NB}
    s_cbranch_scc1 L_EXIT
    s_sub_u32 s49, s2, {NA+NX}       ; d
    s_lshl_b32 s50, s49, 9
    v_lshl_add_u32 v132, v0, 1, s50
    s_lshl_b32 s50, s49, 1
    v_mov_b32 v133, s50
    v_sub_u32 v36, 255, v0           ; k
    v_lshlrev_b32 v37, 19, v36
    v_and_b32 v37, 0x80000, v37
    v_or_b32 v37, 0x88800000, v37
    v_mov_b32 v38, 0x88444000
    v_cmp_gt_u32 vcc, 128, v36
    v_cndmask_b32 v37, v37, v38, vcc
    v_mov_b32 v38, 0x86444200
    v_cmp_gt_u32 vcc, 64, v36
    v_cndmask_b32 v37, v37, v38, vcc
    v_mov_b32 v38, 0x76543210
    v_cmp_gt_u32 vcc, 32, v36
    v_cndmask_b32 v37, v37, v38, vcc
    v_cmp_ge_u32 vcc, 32, v36
    v_lshlrev_b32 v36, 4, v36
    v_cndmask_b32 v38, 2, 0, vcc
    v_add_u32 v{GA+8}, v36, v38
    s_waitcnt lgkmcnt(0)
    global_load_short_d16_hi v8, v133, s[36:37]
    global_load_short_d16_hi v2, v132, s[24:25]
    global_load_short_d16_hi v130, v132, s[26:27]
    global_load_short_d16_hi v4, v132, s[28:29]
    global_load_short_d16_hi v5, v132, s[30:31]
    global_load_short_d16_hi v6, v132, s[32:33]
    global_load_short_d16_hi v7, v132, s[34:35]
    global_load_short_d16_hi v9, v133, s[38:39]
    """)
    A.stamp(1)
    for j in range(8):
        A(f"v_bfe_u32 v38, v37, {4*(7-j)}, 4\nv_lshl_add_u32 v{GA+j}, v38, 1, v36")
    ACC = 136
    for k in range(16): A(f"v_mov_b64 {vr(ACC+2*k,2)}, 0")
    A(f"""
    s_mul_i32 s51, s48, {WR}
    s_mov_b32 m0, s51
    v_and_b32 v36, 31, v1
    v_mul_u32_u24 v37, {RS}, v36
    v_lshrrev_b32 v38, 5, v1
    v_lshl_add_u32 v37, v38, 4, v37
    v_add_u32 v37, s51, v37
    s_mul_i32 s52, s48, {US}
    s_add_u32 s52, s52, {UB}
    v_add_u32 v39, s52, v3
    s_mov_b64 exec, 0xffffff
    ds_write_b128 v39, {vr(ACC,4)}
    s_mov_b64 exec, -1
    s_add_u32 s52, s52, 384
    s_mul_i32 s53, s49, {ROWS}
    s_lshl_b32 s54, s48, 2
    s_add_u32 s53, s53, s54
    s_add_u32 s53, s53, {XT_OFF - 12}
    s_mov_b32 s12, s44
    s_mov_b32 s13, s45
    s_mov_b32 s14, 256
    s_mov_b32 s15, 0x20000
    s_lshr_b32 s54, s49, 6
    s_lshl_b32 s54, s54, 5
    v_and_b32 v131, 7, v1
    v_lshlrev_b32 v131, 2, v131
    s_mov_b32 s55, 0                 ; U requested
    """)
    A.stamp(2)
    A(f"""
    s_waitcnt vmcnt(7)
    v_mul_f32 v8, {fhex(LOG2E)}, v8
    v_exp_f32 v8, v8
    v_cvt_pk_bf16_f32 v8, v8, v8
    v_lshlrev_b32 v8, 16, v8         ; dt
    s_waitcnt vmcnt(5)
    v_mul_f32 v2, v8, v2
    v_mul_f32 v130, v8, v130
    v_mul_f32 v2, {fhex(LOG2E)}, v2
    v_mul_f32 v130, 0.15915494, v130
    """)
    for (E, mlt) in ((E1, 1.0), (E256, 256.0), (E8, 8.0)):
        A(f"""
        v_mul_f32 v{T}, {fhex(mlt)}, v2
        v_mul_f32 v{T+1}, {fhex(mlt)}, v130
        v_exp_f32 v{T}, v{T}
        v_fract_f32 v{T+1}, v{T+1}
        v_cos_f32 v{E}, v{T+1}
        v_sin_f32 v{E+1}, v{T+1}
        v_pk_mul_f32 {vr(E,2)}, {vr(E,2)}, {vr(T,2)} op_sel_hi:[1,0]
        """)
    A(f"""
    s_waitcnt vmcnt(1)
    v_pk_mul_f32 v[4:5], v[4:5], v[8:9] op_sel_hi:[1,0]
    """)
    A.stamp(3)
    cmul(A, Q, 6, 4, T)
    cnt = [0]
    def put(row, reg, neg):
        c = CV + (cnt[0] & 1); cnt[0] += 1
        A(f"v_cvt_pk_bf16_f32 v{c}, v{reg}, {'-' if neg else ''}v{reg+1}\nds_write_addtid_b32 v{c} offset:{RS*row}")
    put(0, Q, 1)
    for r in range(1, 8):
        cmul(A, Q + 2*r, Q + 2*(r-1), E1, T); put(r, Q + 2*r, 1)
    for i, r in enumerate((0, 2, 4, 6)):
        cmul(A, Q + 2*r, Q + 2*r, E256, T); put(8 + i, Q + 2*r, 1)
    for i in range(2):
        for jj, r in enumerate((0, 4)):
            cmul(A, Q + 2*r, Q + 2*r, E256, T); put(12 + 2*i + jj, Q + 2*r, 1)
    for i in range(5):
        cmul(A, Q, Q, E256, T); put(16 + i, Q, 1)
    for u in range(8): A(f"ds_read_b128 {vr(AF+4*u,4)}, v37 offset:{32*u}")
    A(f"v_mov_b32 v{CV}, 0x3f80\nds_write_addtid_b32 v{CV}")
    cnt[0] = 1
    put(1, E8, 0)
    cmul(A, Q, E8, E8, T); put(2, Q, 0)
    for r in range(3, 32):
        cmul(A, Q, Q, E8, T); put(r, Q, 0)
    A.stamp(4)
    for u in range(8): A(f"ds_read_b128 {vr(BF+4*u,4)}, v37 offset:{32*u}")
    A("buffer_load_dword v130, v131, s[12:15], s54 offen sc1")
    A(f"""
    s_lshl_b32 s56, s48, 1
    v_add_u32 v38, s56, v38          ; gamma
    v_lshlrev_b32 v2, 2, v38
    v_lshlrev_b32 v10, v38, 64
    v_cmp_le_u32 vcc, 2, v38
    v_cndmask_b32 v10, v2, v10, vcc
    v_lshl_add_u32 v10, v36, 3, v10
    v_lshlrev_b32 v10, 1, v10
    s_mov_b32 s56, 0x082100
    s_mov_b32 s57, 0x198211
    v_bfe_u32 v4, s56, v2, 4
    v_bfe_u32 v5, s57, v2, 4
    v_lshlrev_b32 v4, v4, 2
    v_lshlrev_b32 v5, v5, 2
    v_add_u32 v6, v10, v5            ; r=2
    v_add_u32 v5, v6, v4             ; r=3
    v_add_u32 v4, v10, v4            ; r=1
    v_add_u32 v7, s51, v3
    v_lshlrev_b32 v2, 4, v0
    v_cmp_eq_u32 vcc, 0, v0
    s_waitcnt vmcnt(1)
    v_cndmask_b32 v9, 0, v9, vcc
    """)
    for u in range(8):
        A(f"s_waitcnt lgkmcnt({7-u})")
        c = "0" if u == 0 else vr(KA, 16)
        A(f"v_mfma_f32_32x32x16_bf16 {vr(KA,16)}, {vr(AF+4*u,4)}, {vr(BF+4*u,4)}, {c}")
    A(f"""
    v_and_b32 v16, 15, v1            ; m / col
    v_lshrrev_b32 v17, 4, v1         ; kg / g
    v_lshrrev_b32 v18, 2, v16
    v_lshrrev_b32 v19, 1, v18
    v_xor_b32 v20, v18, v19          ; gray
    v_xor_b32 v21, s48, v16
    v_and_b32 v22, 1, v21            ; rho
    v_bfe_u32 v21, v21, 1, 1
    v_lshl_add_u32 v21, v21, 2, v20  ; i
    v_sub_u32 v21, v17, v21
    v_lshlrev_b32 v21, 4, v21
    v_mul_u32_u24 v22, {RSZ}, v22
    """)
    for i in range(3): A(f"ds_write_b128 v7, {vr(KA+4*i,4)} offset:{1024*i}")
    def try_u(lbl, reissue):
        A(f"""
        s_cmp_lg_u32 s55, 0
        s_cbranch_scc1 {lbl}
        s_waitcnt vmcnt(0)
        v_cmp_ne_u32 vcc, 1, v130
        s_cbranch_vccnz {lbl}_N
        s_mov_b32 m0, s52
        s_mov_b32 s55, 1
        """)
        for i in range(4): A(f"buffer_load_dwordx4 v3, s[8:11], s53 offen offset:{1024*i} sc1 lds")
        A(f"s_branch {lbl}\n{lbl}_N:\nbuffer_load_dword v130, v131, s[12:15], s54 offen sc1\n{lbl}:")
    try_u("L_U1", True)
    A(f"""
    s_lshl_b32 s56, s48, 7
    s_sub_u32 s57, {RB + 560 - 64}, s56
    v_add3_u32 v11, v21, v22, s57
    v_and_b32 v20, 1, v20
    v_lshl_add_u32 v20, v20, 1, v19  ; c'
    v_and_b32 v22, 3, v16            ; sigma
    v_mul_u32_u24 v12, {US}, v22
    v_lshl_add_u32 v12, v20, 7, v12
    v_lshl_add_u32 v12, v17, 4, v12
    s_sub_u32 s57, {UB + 448 - 64}, s56
    v_add_u32 v12, s57, v12          ; B base
    s_waitcnt lgkmcnt(0)
    """)
    A.stamp(5)
    A(f"""
    s_barrier
    s_cmp_eq_u32 s48, 3
    s_cbranch_scc1 L_K3
    """)
    for s_ in range(4): A(f"ds_read_b128 {vr(AF+4*s_,4)}, v2 offset:{WR*s_}")
    A("s_waitcnt lgkmcnt(2)")
    A(f"v_add_f32 v{AF}, v9, v{AF}")
    for k in range(2): A(f"v_pk_add_f32 {vr(AF+2*k,2)}, {vr(AF+2*k,2)}, {vr(AF+4+2*k,2)}")
    A("s_waitcnt lgkmcnt(0)")
    for k in range(2): A(f"v_pk_add_f32 {vr(AF+8+2*k,2)}, {vr(AF+8+2*k,2)}, {vr(AF+12+2*k,2)}")
    for k in range(2): A(f"v_pk_add_f32 {vr(AF+2*k,2)}, {vr(AF+2*k,2)}, {vr(AF+8+2*k,2)}")
    A(f"""
    v_cvt_pk_bf16_f32 v{AF}, v{AF}, v{AF+1}
    v_cvt_pk_bf16_f32 v{AF+2}, v{AF+2}, v{AF+3}
    ds_write_b16 v10, v{AF} offset:{TAB}
    ds_write_b16_d16_hi v4, v{AF} offset:{TAB}
    ds_write_b16 v6, v{AF+2} offset:{TAB}
    ds_write_b16_d16_hi v5, v{AF+2} offset:{TAB}
    s_branch L_K2
    L_K3:
    v_and_b32 v4, 7, v1
    v_lshlrev_b32 v4, 4, v4
    v_bfe_u32 v5, v1, 3, 1
    v_mul_u32_u24 v5, {RSZ}, v5
    v_add_u32 v4, v4, v5
    v_add_u32 v4, {RB+4096}, v4
    v_mov_b32 v5, {TAB-16}
    v_cmp_eq_u32 vcc, 7, v1
    v_cndmask_b32 v4, v4, v5, vcc
    s_mov_b64 exec, 0x7fff
    ds_write_b128 v4, {vr(ACC,4)}
    s_mov_b64 exec, -1
    L_K2:
    v_lshrrev_b32 v13, 1, v17
    v_xor_b32 v13, v17, v13
    v_lshlrev_b32 v13, 2, v13
    v_add_u32 v13, v13, v22
    v_mul_u32_u24 v13, {2*448*64}, v13
    v_lshl_add_u32 v13, v20, 4, v13
    s_waitcnt lgkmcnt(0)
    s_barrier
    """)
    A.stamp(6)
    for j in range(8):
        A(f"ds_read_u16_d16{'_hi' if j & 1 else ''} v{BF+j}, v{GA+j} offset:{TAB}")
    A(f"ds_read_u16_d16 v{BF+12}, v{GA+8} offset:{TAB-2}")
    try_u("L_U2", True)
    A(f"""
    s_lshr_b32 s56, s48, 1
    s_lshl_b32 s56, s56, 5
    s_and_b32 s57, s48, 1
    s_add_u32 s56, s56, s57
    s_mul_i32 s56, s56, 448
    s_add_u32 s56, s56, s49
    s_lshl_b32 s56, s56, 6
    s_add_u32 s56, s56, {BT_OFF}
    v_lshlrev_b32 v14, 2, v1
    """)
    for r in (1, 2, 3):
        A(f"s_xor_b32 s57, s48, {r}\ns_mul_i32 s57, s57, 6144\ns_add_u32 s57, s57, {(r-1)*2048}\nv_add_u32 v{4+r}, s57, v14")
    A("s_mul_i32 s57, s48, 6144\nv_add_u32 v14, s57, v14\ns_waitcnt lgkmcnt(0)")
    for k in range(4): A(f"v_or_b32 v{BF+8+k}, v{BF+2*k}, v{BF+2*k+1}")
    for k in range(4): A(f"v_alignbit_b32 v{BF+k}, v{BF+9+k}, v{BF+8+k}, 16")
    A(f"""
    ds_write_b128 v2, {vr(BF+8,4)} offset:{RB+RSZ}
    ds_write_b128 v2, {vr(BF,4)} offset:{RB}
    s_mov_b32 s57, 0
    L_UP:
    """)
    try_u("L_U3", True)
    A(f"""
    s_add_u32 s57, s57, 1
    s_cmp_gt_u32 s57, {SPIN}
    s_cbranch_scc1 L_UD
    s_cmp_eq_u32 s55, 0
    s_cbranch_scc0 L_UD
    s_sleep 2
    s_branch L_UP
    L_UD:
    """)
    A.stamp(7)
    A("s_waitcnt vmcnt(0) lgkmcnt(0)\ns_barrier")
    A.stamp(8)
    FB = 16; NSLOT = 28
    lg = LG(A, "lgkmcnt", 15)
    free = list(range(NSLOT)); loc = {}
    reads = []
    for it in range(2):
        for k in range(8): reads += [(it, "B", k), (it, "A", k)]
    mf = []
    for it in range(2):
        for k in range(8):
            prs = [(k, j) for j in range(k + 1)] + [(i, k) for i in range(k)]
            prs = [p for p in prs if p[0] + p[1] <= 7]
            prs.sort(key=lambda p: (p[0] == k, p[1]))
            mf += [(it,) + p for p in prs]
    last = {}
    for n, (it, i, j) in enumerate(mf):
        last[(it, "A", i)] = n; last[(it, "B", j)] = n
    rp = [0]
    def issue_reads(maxn):
        n = 0
        while rp[0] < len(reads) and free and len(lg.q) < 15 and n < maxn:
            key = reads[rp[0]]; rp[0] += 1; n += 1
            sl = free.pop(0); loc[key] = sl
            it, kind, k = key
            extra = 64 if it == 0 else 0
            if kind == "A": A(f"ds_read_b128 {vr(FB+4*sl,4)}, v11 offset:{512*(7-k)+extra}")
            else: A(f"ds_read_b128 {vr(FB+4*sl,4)}, v12 offset:{512*k+extra}")
            lg.issue(key)
    issue_reads(8)
    for n, (it, i, j) in enumerate(mf):
        ka, kb = (it, "A", i), (it, "B", j)
        while ka not in loc or kb not in loc: issue_reads(1)
        later = ka if reads.index(ka) > reads.index(kb) else kb
        lg.wait(later)
        t = i + j
        A(f"v_mfma_f32_16x16x32_bf16 {vr(ACC+4*t,4)}, {vr(FB+4*loc[ka],4)}, {vr(FB+4*loc[kb],4)}, {vr(ACC+4*t,4)}")
        for key in (ka, kb):
            if last[key] == n: free.append(loc[key])
        issue_reads(1)
    A.stamp(9)
    for t in range(0, 8, 2):
        for r in (1, 2, 3):
            A(f"ds_write2st64_b32 v{4+r}, v{ACC+4*t+r}, v{ACC+4*(t+1)+r} offset0:{t} offset1:{t+1}")
    A("s_waitcnt lgkmcnt(0)\ns_barrier")
    A.stamp(10)
    for t in range(0, 8, 2):
        for r in range(3):
            A(f"ds_read2st64_b32 {vr(FB+3*t+2*r,2)}, v14 offset0:{8*r+t} offset1:{8*r+t+1}")
    for t in range(0, 8, 2):
        X = FB + 3*t
        A(f"""
        s_waitcnt lgkmcnt({9 - 3*(t//2)})
        v_pk_add_f32 {vr(X,2)}, {vr(X,2)}, {vr(X+2,2)}
        v_add_f32 v{X+4}, v{X+4}, v{ACC+4*t}
        v_add_f32 v{X+5}, v{X+5}, v{ACC+4*t+4}
        v_pk_add_f32 {vr(X,2)}, {vr(X,2)}, {vr(X+4,2)}
        v_cvt_pk_bf16_f32 v{FB+24+t//2}, v{X}, v{X+1}
        """)
    A(f"buffer_store_dwordx4 {vr(FB+24,4)}, v13, s[8:11], s56 offen sc1")
    A.end()

def build(path):
    A = Asm(kidx=0); gen(A)
    s = f"; @launch grid=({NA+NX+NB},1,1) block=(256,1,1) lds={LDS_BYTES}\n"
    s += '.amdgcn_target "amdgcn-amd-amdhsa--gfx950"\n.text\n' + A.text()
    s += f""".section .rodata,"a"
.p2align 6
.amdhsa_kernel {KN}
  .amdhsa_next_free_vgpr 168
  .amdhsa_next_free_sgpr {100 if Asm.DIAG else 64}
  .amdhsa_accum_offset 168
  .amdhsa_group_segment_fixed_size 0
  .amdhsa_kernarg_size 128
  .amdhsa_user_sgpr_count 2
  .amdhsa_user_sgpr_kernarg_segment_ptr 1
  .amdhsa_system_sgpr_workgroup_id_x 1
.end_amdhsa_kernel
"""
    open(path, "w").write(s)

if __name__ == "__main__":
    Asm.DIAG = len(sys.argv) > 2 and sys.argv[2] == "diag"
    build(sys.argv[1])
```

```python
import sys
KN = "gated_mix__spectral_gfnet__ssm_conv_s4__prompt_kernel"
SLOT = 0x5F0000
def build(src, name, anchor, nth, red, rel, mult=8, after=True):
    s = open(src).read()
    t = s.replace(KN + ":\n", KN + ":\n    s_memrealtime s[70:71]\n", 1)
    if anchor is not None:
        pos = -1
        for _ in range(nth + 1): pos = t.index(anchor, pos + 1)
        if after: pos += len(anchor)
        t = t[:pos] + "    s_memrealtime s[78:79]\n" + t[pos:]
    pub = "L_AEND:\n    s_waitcnt vmcnt(0) lgkmcnt(0)\n    s_mov_b64 exec, -1\n"
    if anchor is None: pub += "    s_mov_b32 s78, s70\n"
    pub += ("    s_sub_u32 s74, s78, s70\n" if rel else "    s_mov_b32 s74, s78\n")
    pub += f"""    v_mov_b32 v4, s74
    v_mov_b32 v8, s70
    s_lshl_b32 s75, s2, 2
    s_add_u32 s75, s75, s48
    s_lshl_b32 s75, s75, 2
    s_add_u32 s75, s75, {SLOT}
    v_mov_b32 v5, 0
    s_mov_b64 exec, 1
    buffer_store_dword v4, v5, s[8:11], s75 offen sc1
    buffer_store_dword v8, v5, s[8:11], s75 offen offset:4092 sc1
    s_mov_b64 exec, -1
    s_cmp_lg_u32 s2, 63
    s_cbranch_scc1 L_LE
    s_cmp_lg_u32 s48, 3
    s_cbranch_scc1 L_LE
L_W0:
    s_memrealtime s[76:77]
    s_waitcnt lgkmcnt(0)
    s_sub_u32 s75, s76, s70
    s_cmp_lt_u32 s75, 2000
    s_cbranch_scc1 L_W0
    v_lshlrev_b32 v5, 4, v1
    s_mov_b32 s75, {SLOT}
"""
    for i in range(4): pub += f"    buffer_load_dwordx4 v[{8+4*i}:{11+4*i}], v5, s[8:11], s75 offen offset:{1024*i} sc1\n"
    pub += "    s_waitcnt vmcnt(0)\n"
    if not rel:
        for i in range(16): pub += f"    v_subrev_u32 v{8+i}, s70, v{8+i}\n    v_add_u32 v{8+i}, 1000, v{8+i}\n"
    def reduce(op, dst):
        c = f"    v_mov_b32 v{dst}, v8\n"
        for i in range(1, 15): c += f"    {op} v{dst}, v{dst}, v{8+i}\n"
        c += f"    s_nop 1\n    v_readlane_b32 s{60+dst-30}, v{dst}, 0\n"
        sop = {"v_max_u32": "s_max_u32", "v_min_u32": "s_min_u32", "v_add_u32": "s_add_u32"}[op]
        for l in range(1, 64): c += f"    v_readlane_b32 s75, v{dst}, {l}\n    s_nop 1\n    {sop} s{60+dst-30}, s{60+dst-30}, s75\n"
        return c
    if red == "spread": pub += reduce("v_max_u32", 30) + reduce("v_min_u32", 31) + "    s_sub_u32 s74, s60, s61\n"
    elif red == "max": pub += reduce("v_max_u32", 30) + "    s_mov_b32 s74, s60\n"
    elif red == "min": pub += reduce("v_min_u32", 30) + "    s_mov_b32 s74, s60\n"
    elif red == "mean": pub += reduce("v_add_u32", 30) + "    s_mul_i32 s74, s60, 68\n    s_lshr_b32 s74, s74, 16\n"
    elif red == "zero": pub += "    s_mov_b32 s74, 0\n"
    pub += f"""    s_mul_i32 s74, s74, {mult}
    s_min_u32 s74, s74, 30000
    s_add_u32 s74, s74, 2500
L_SPIN:
    s_memrealtime s[76:77]
    s_waitcnt lgkmcnt(0)
    s_sub_u32 s75, s76, s70
    s_cmp_lt_u32 s75, s74
    s_cbranch_scc1 L_SPIN
L_LE:
    s_endpgm
"""
    label = "L_AEND:\n    s_endpgm\n"
    assert label in t
    t = t.replace(label, pub).replace("next_free_sgpr 64", "next_free_sgpr 80")
    open(f'work/{name}.s', 'w').write(t)
if __name__ == "__main__":
    src = sys.argv[1]
    B = "    s_barrier\n"
    build(src, "m0", None, 0, "zero", True)
    build(src, "m1", None, 0, "spread", False)
    build(src, "m2", B, 0, "mean", True)
    build(src, "m3", "    s_waitcnt vmcnt(0) lgkmcnt(0)\n    s_barrier\n", 0, "mean", True, after=False)
    build(src, "m4", B, 1, "mean", True)
    build(src, "m5", "L_VD:\n", 0, "mean", True)
```
